```python
import torch

def _softmax(x, axis=-1):
    return torch.softmax(x, dim=axis)

def _gelu(x):
    return torch.nn.functional.gelu(x, approximate='tanh')

def _silu(x):
    return torch.nn.functional.silu(x)

def _sigmoid(x):
    return torch.sigmoid(x)

def _layernorm(x, axis=-1, eps=1e-05):
    m = x.mean(dim=axis, keepdim=True)
    v = x.var(dim=axis, keepdim=True, unbiased=False)
    return (x - m) / torch.sqrt(v + eps)

def _scatter_add(tgt, idx, src, axis=0):
    return tgt.clone().index_add_(axis, idx, src)

def _segment_sum(src, seg, n):
    out = torch.zeros((n,) + src.shape[1:], dtype=src.dtype)
    return out.index_add_(0, seg, src)

def _pad(x, pw):
    flat = tuple((v for pair in reversed(pw) for v in pair))
    return torch.nn.functional.pad(x, flat)
kernel_name = 'adaLN_cond__mha_block_cached__mixer_gmlp__prompt'

def setup_inputs():

    _w = lambda a: (lambda t: t.to(torch.bfloat16) if t.is_floating_point() else t)(torch.as_tensor(a))

    def _A_setup():
        B, Sq, D = (1, 2048, 512)
        H, Sk, Dh = (32, 2048, 128)
        return {'x': _w((lambda *s: torch.randn(*s, dtype=torch.bfloat16) * 0.05)(B, Sq, D)), 'k_cache': _w((lambda *s: torch.randn(*s, dtype=torch.bfloat16) * 3.2)(B, H, Sk, Dh)), 'v_cache': _w((lambda *s: torch.randn(*s, dtype=torch.bfloat16) * 0.4)(B, H, Sk, Dh)), 'wq': _w((lambda *s: torch.randn(*s, dtype=torch.bfloat16) * 3.2)(D, H * Dh) * D ** (-0.5)), 'wo': _w((lambda *s: torch.randn(*s, dtype=torch.bfloat16) * 0.4)(H * Dh, D) * (H * Dh) ** (-0.5))}
    _A_in = _A_setup()

    def _B_setup():
        B, S, D, F = (1, 2048, 512, 1792)
        Fh = F // 2
        return {'x': _w((lambda *s: torch.randn(*s, dtype=torch.bfloat16) * 0.05)(B, S, D)), 'w_in': _w((lambda *s: torch.randn(*s, dtype=torch.bfloat16) * 0.8)(D, 2 * Fh)), 'w_sp': _w(0.01 * (lambda *s: torch.randn(*s, dtype=torch.bfloat16) * 0.8)(S, S)), 'b_sp': _w(1.0 + 0.01 * (lambda *s: torch.randn(*s, dtype=torch.bfloat16) * 0.05)(S)), 'w_out': _w((lambda *s: torch.randn(*s, dtype=torch.bfloat16) * 0.05)(Fh, D))}
    _B_in = _B_setup()
    return {'A_x': _A_in['x'], 'A_k_cache': _A_in['k_cache'], 'A_v_cache': _A_in['v_cache'], 'A_wq': _A_in['wq'], 'A_wo': _A_in['wo'], 'B_x': _B_in['x'], 'B_w_in': _B_in['w_in'], 'B_w_sp': _B_in['w_sp'], 'B_b_sp': _B_in['b_sp'], 'B_w_out': _B_in['w_out'], 'c': _w((lambda *s: torch.randn(*s, dtype=torch.bfloat16) * 0.1)(1, 512) * 8.0), 'w_mod': _w((lambda *s: torch.randn(*s, dtype=torch.bfloat16) * 0.1)(512, 6 * 512) * 512 ** (-0.5) * 8.0)}

def reference(A_x, A_k_cache, A_v_cache, A_wq, A_wo, B_x, B_w_in, B_w_sp, B_b_sp, B_w_out, c, w_mod):

    def _A_ref(x, k_cache, v_cache, wq, wo):
        B, Sq, D = x.shape
        H, Dh = (32, 128)
        q = (lambda x, *d: x.permute(*d))((x @ wq).reshape(B, Sq, H, Dh), 0, 2, 1, 3)
        scores = torch.einsum('bhqd,bhkd->bhqk', q, k_cache) * Dh ** (-0.5)
        p = _softmax(scores, axis=-1)
        o = torch.einsum('bhqk,bhkd->bhqd', p, v_cache)
        return (lambda x, *d: x.permute(*d))(o, 0, 2, 1, 3).reshape(B, Sq, H * Dh) @ wo

    def _B_ref(x, w_in, w_sp, b_sp, w_out):
        B, S, D = x.shape
        F = w_in.shape[-1]
        Fh = F // 2
        z = _gelu(torch.einsum('bsd,df->bsf', x, w_in))
        z1 = z[..., :Fh].clone()
        z2 = _layernorm(z[..., Fh:], axis=-1)
        g = torch.einsum('ts,bsf->btf', w_sp, z2) + b_sp[None, :, None]
        return torch.einsum('bsf,fd->bsd', z1 * g, w_out)
    x = A_x
    mod = (_silu(c) @ w_mod).reshape(c.shape[0], 6, 1, -1)
    sa, ca, ga, sb, cb, gb = (mod[:, 0].clone(), mod[:, 1].clone(), mod[:, 2].clone(), mod[:, 3].clone(), mod[:, 4].clone(), mod[:, 5].clone())
    h = _layernorm(x, axis=-1) * (1 + ca) + sa
    x = x + ga * _A_ref(h, A_k_cache, A_v_cache, A_wq, A_wo)
    h = _layernorm(x, axis=-1) * (1 + cb) + sb
    x = x + gb * _B_ref(h, B_w_in, B_w_sp, B_b_sp, B_w_out)
    return x
```

```python
import re

TRANS = ("v_exp_f32", "v_log_f32", "v_rcp_f32", "v_rsq_f32", "v_sqrt_f32", "v_sin_f32", "v_cos_f32")


def _split_ops(s):
    out, depth, cur = [], 0, ""
    for ch in s:
        if ch == "[":
            depth += 1
        elif ch == "]":
            depth -= 1
        if ch == "," and depth == 0:
            out.append(cur.strip())
            cur = ""
        else:
            cur += ch
    if cur.strip():
        out.append(cur.strip())
    return out


_RE_RANGE = re.compile(r"^(-?\|?)([vsa])\[(\d+):(\d+)\]")
_RE_ONE = re.compile(r"^(-?\|?)([vsa])(\d+)\b")


def regs_of(op):
    op = op.strip()
    m = _RE_RANGE.match(op)
    if m:
        return {(m.group(2), i) for i in range(int(m.group(3)), int(m.group(4)) + 1)}
    m = _RE_ONE.match(op)
    if m:
        return {(m.group(2), int(m.group(3)))}
    if op.startswith("vcc"):
        return {("s", "vcc")}
    if op.startswith("exec"):
        return {("s", "exec")}
    if op == "m0":
        return {("s", "m0")}
    return set()


class Ins:
    __slots__ = ("text", "mn", "dst", "src", "kind", "srcc", "passes")

    def __init__(self, text):
        self.text = text
        body = text.split(";")[0].strip()
        parts = body.split(None, 1)
        self.mn = parts[0]
        rest = parts[1] if len(parts) > 1 else ""
        ops = _split_ops(rest)
        if ops:
            last = ops[-1].split()
            ops[-1] = last[0] if last else ""
            mods = " ".join(last[1:])
        else:
            mods = ""
        self.dst, self.src, self.srcc = set(), set(), set()
        self.passes = 0
        mn = self.mn
        if mn.startswith("v_mfma"):
            self.kind = "mfma"
            self.passes = 8 if "32x32x16" in mn else 4
            self.dst = regs_of(ops[0])
            self.src = regs_of(ops[1]) | regs_of(ops[2])
            self.srcc = regs_of(ops[3])
        elif mn.startswith("v_"):
            self.kind = "valu"
            if mn.startswith("v_readlane") or mn.startswith("v_readfirstlane"):
                self.dst = regs_of(ops[0])
                for o in ops[1:]:
                    self.src |= regs_of(o)
            elif mn.startswith("v_cmp"):
                if len(ops) == 3:
                    self.dst = regs_of(ops[0])
                    for o in ops[1:]:
                        self.src |= regs_of(o)
                else:
                    self.dst = {("s", "vcc")}
                    for o in ops:
                        self.src |= regs_of(o)
            elif "_co_" in mn:
                self.dst = regs_of(ops[0]) | regs_of(ops[1])
                for o in ops[2:]:
                    self.src |= regs_of(o)
            elif mn.startswith("v_permlane") and "swap" in mn:
                self.dst = regs_of(ops[0]) | regs_of(ops[1])
                self.src = set(self.dst)
            else:
                self.dst = regs_of(ops[0])
                for o in ops[1:]:
                    self.src |= regs_of(o)
                if mn.startswith("v_cndmask") and len(ops) == 3:
                    self.src |= {("s", "vcc")}
                if mn.startswith("v_fmac") or mn.startswith("v_mac") or "dot2c" in mn:
                    self.src |= self.dst
        elif mn.startswith("ds_"):
            self.kind = "ds"
            if "read" in mn or "bpermute" in mn or "swizzle" in mn:
                self.dst = regs_of(ops[0])
                for o in ops[1:]:
                    self.src |= regs_of(o)
            else:
                for o in ops:
                    self.src |= regs_of(o)
        elif mn.startswith("buffer_") or mn.startswith("global_"):
            self.kind = "vmem"
            is_lds = " lds" in (" " + mods) or "_lds_" in mn
            if "load" in mn and not is_lds:
                self.dst = regs_of(ops[0])
                for o in ops[1:]:
                    self.src |= regs_of(o)
            else:
                for o in ops:
                    self.src |= regs_of(o)
                if is_lds:
                    self.src |= {("s", "m0")}
        elif mn.startswith("s_"):
            self.kind = "salu"
            if mn in ("s_nop", "s_waitcnt", "s_barrier", "s_endpgm", "s_branch", "s_setprio") or mn.startswith(
                "s_cbranch"
            ):
                pass
            elif mn.startswith("s_cmp"):
                for o in ops:
                    self.src |= regs_of(o)
            else:
                if ops:
                    self.dst = regs_of(ops[0])
                for o in ops[1:]:
                    self.src |= regs_of(o)
        else:
            self.kind = "other"


class Asm:
    def __init__(self):
        self.out = []
        self.hist = []
        self.nops_added = 0

    def raw(self, s):
        self.out.append(s)

    def comment(self, s):
        self.out.append("    ; " + s)

    def label(self, name):
        self.flush()
        self.out.append(name + ":")

    def flush(self):
        need = 0
        n = len(self.hist)
        dist = 0
        for k in range(n - 1, -1, -1):
            ins, st = self.hist[k]
            if dist >= 13:
                break
            req = 0
            if ins.kind == "mfma":
                req = 12 if ins.passes == 8 else 8
            elif ins.kind == "valu":
                req = 5
            elif ins.kind == "salu" and ("s", "m0") in ins.dst:
                req = 1
            elif ins.kind == "vmem":
                req = 2
            need = max(need, req - dist)
            dist += st
        if need > 0:
            self._nop(need)

    def _nop(self, n):
        while n > 0:
            k = min(n, 8)
            self.out.append("    s_nop %d" % (k - 1))
            self.hist.append((Ins("s_nop %d" % (k - 1)), k))
            self.nops_added += k
            n -= k

    def _need(self, ins):
        need = 0
        dist = 0
        for k in range(len(self.hist) - 1, -1, -1):
            if dist >= 13:
                break
            p, st = self.hist[k]
            req = 0
            if p.kind == "mfma":
                P12 = 12 if p.passes == 8 else 8
                P10 = 10 if p.passes == 8 else 6
                P7 = 7 if p.passes == 8 else 3
                if ins.kind == "mfma":
                    if ins.src & p.dst:
                        req = max(req, P12)
                    if ins.srcc & p.dst:
                        if not (ins.srcc == p.dst and ins.passes == p.passes):
                            req = max(req, P10)
                else:
                    if (ins.src | ins.dst) & p.dst:
                        req = max(req, P12)
                    if ins.kind == "valu" and (ins.dst & p.srcc):
                        req = max(req, P7)
            elif p.kind == "valu":
                pv = {r for r in p.dst if r[0] in "va"}
                ps = {r for r in p.dst if r[0] == "s"}
                if ins.kind == "mfma" and (ins.src | ins.srcc) & pv:
                    req = max(req, 2)
                if ins.kind == "valu":
                    if (ins.mn.startswith("v_readlane") or ins.mn.startswith("v_readfirstlane")) and ins.src & pv:
                        req = max(req, 1)
                    if ins.mn.startswith("v_permlane") and ins.src & pv:
                        req = max(req, 2)
                    if ("dpp" in ins.text or "row_" in ins.text or "quad_perm" in ins.text) and ins.src & pv:
                        req = max(req, 2)
                    if p.mn.startswith(TRANS) and not ins.mn.startswith(TRANS) and ins.src & pv:
                        req = max(req, 1)
                    if ins.src & ps:
                        req = max(req, 2)
                    if (ins.mn.startswith("v_readlane") or ins.mn.startswith("v_writelane")) and ins.src & ps:
                        req = max(req, 4)
                if ins.kind == "vmem" and ins.src & ps:
                    req = max(req, 5)
                if ("s", "exec") in p.dst and ins.kind == "mfma":
                    req = max(req, 4)
            elif p.kind == "salu":
                if ("s", "m0") in p.dst and ins.kind == "vmem" and ("s", "m0") in ins.src:
                    req = max(req, 1)
            elif p.kind == "vmem":
                if ("x4" in p.mn or "x3" in p.mn) and "store" in p.mn:
                    if ins.dst & p.src:
                        req = max(req, 2)
            need = max(need, req - dist)
            dist += st
        return need

    def i(self, text):
        text = text.strip()
        ins = Ins(text)
        if ins.mn.startswith("s_cbranch") or ins.mn == "s_branch":
            self.flush()
        n = self._need(ins)
        if n > 0:
            self._nop(n)
        self.out.append("    " + text)
        st = 1
        if ins.mn == "s_nop":
            st = int(text.split()[1]) + 1
        self.hist.append((ins, st))
        if len(self.hist) > 64:
            self.hist = self.hist[-32:]

    def text(self):
        return "\n".join(self.out) + "\n"
```

```python
import sys
sys.path.insert(0, "gen")
from gen import *


def gen_attn():
    name = "attn_kernel"
    LDS = 131072
    k = Kern(name, (256, 1, 1), (512, 1, 1), LDS, 256)
    a = k.a
    begin(k)
    a.i("s_cmp_ge_u32 s2, 256")
    a.i("s_cbranch_scc1 .Lend_" + name)
    srd_from_kernarg(a, 4, KA_K, 0)
    srd_from_kernarg(a, 8, KA_V, 0)
    srd_from_kernarg(a, 12, KA_WS, 0)
    a.i("v_and_b32 v1, 63, v0")
    a.i("v_lshrrev_b32 v2, 6, v0")
    a.i("v_readfirstlane_b32 s3, v2")
    a.i("s_and_b32 s16, s2, 7")
    a.i("s_lshr_b32 s17, s2, 3")
    a.i("s_and_b32 s18, s17, 7")
    a.i("s_lshr_b32 s17, s17, 3")
    a.i("s_lshl_b32 s17, s17, 3")
    a.i("s_add_u32 s17, s17, s16")
    a.i("s_waitcnt lgkmcnt(0)")
    srd_finish(a, 4, 32 * 524288)
    srd_finish(a, 8, 32 * 524288)
    srd_finish(a, 12, 2048 * 8192, WS_Q)
    V_KA, V_VA, V_DK, V_DV = 4, 12, 16, 17
    V_M, V_L, V_AL, V_MC, V_T0, V_T1 = 18, 19, 20, 21, 22, 23
    V_Q, V_S, V_O, V_KF, V_VF = 32, 64, 128, 192, 224
    a.i("s_lshl_b32 s19, s18, 8")
    a.i("s_lshl_b32 s20, s3, 5")
    a.i("s_add_u32 s19, s19, s20")
    a.i("v_and_b32 v2, 31, v1")
    a.i("v_add_u32 v2, s19, v2")
    a.i("v_lshlrev_b32 v2, 13, v2")
    a.i("v_lshrrev_b32 v3, 5, v1")
    a.i("v_lshlrev_b32 v3, 4, v3")
    a.i("v_add_u32 v2, v2, v3")
    a.i("s_lshl_b32 s20, s17, 8")
    for ks in range(8):
        a.i("buffer_load_dwordx4 v[%d:%d], v2, s[12:15], s20 offen offset:%d" % (V_Q + 4 * ks, V_Q + 4 * ks + 3, 32 * ks))
    a.i("v_lshrrev_b32 v2, 4, v1")
    a.i("v_lshlrev_b32 v3, 8, v2")
    a.i("s_and_b32 s21, s3, 3")
    a.i("s_lshl_b32 s21, s21, 2")
    a.i("v_add_u32 v%d, s21, v2" % V_T0)
    a.i("v_and_b32 v%d, 15, v1" % V_T1)
    a.i("v_xor_b32 v%d, v%d, v%d" % (V_T0, V_T0, V_T1))
    a.i("v_lshlrev_b32 v%d, 4, v%d" % (V_T0, V_T0))
    a.i("v_add_u32 v%d, v3, v%d" % (V_DK, V_T0))
    a.i("v_lshlrev_b32 v%d, 2, v2" % V_T0)
    a.i("v_xor_b32 v%d, v%d, v%d" % (V_T0, V_T0, V_T1))
    a.i("v_lshlrev_b32 v%d, 4, v%d" % (V_T0, V_T0))
    a.i("v_add_u32 v%d, v3, v%d" % (V_DV, V_T0))
    a.i("v_and_b32 v2, 31, v1")
    a.i("v_lshlrev_b32 v2, 8, v2")
    a.i("v_lshrrev_b32 v3, 5, v1")
    for ks in range(8):
        a.i("v_add_u32 v%d, %d, v3" % (V_T0, 2 * ks))
        a.i("v_xor_b32 v%d, v%d, v%d" % (V_T0, V_T0, V_T1))
        a.i("v_lshlrev_b32 v%d, 4, v%d" % (V_T0, V_T0))
        a.i("v_add_u32 v%d, v2, v%d" % (V_KA + ks, V_T0))
    a.i("v_lshrrev_b32 v2, 2, v1")
    a.i("v_and_b32 v2, 3, v2")
    a.i("v_lshrrev_b32 v3, 5, v1")
    a.i("v_lshlrev_b32 v3, 2, v3")
    a.i("v_add_u32 v3, v3, v2")
    a.i("v_lshlrev_b32 v3, 8, v3")
    a.i("v_and_b32 v%d, 1, v1" % V_T0)
    a.i("v_lshlrev_b32 v%d, 3, v%d" % (V_T0, V_T0))
    a.i("v_add_u32 v3, v3, v%d" % V_T0)
    a.i("v_add_u32 v3, 32768, v3")
    a.i("v_lshrrev_b32 v%d, 4, v1" % V_T0)
    a.i("v_and_b32 v%d, 1, v%d" % (V_T0, V_T0))
    a.i("v_lshlrev_b32 v%d, 1, v%d" % (V_T0, V_T0))
    a.i("v_lshrrev_b32 v%d, 1, v1" % V_T1)
    a.i("v_and_b32 v%d, 1, v%d" % (V_T1, V_T1))
    a.i("v_add_u32 v%d, v%d, v%d" % (V_T0, V_T0, V_T1))
    a.i("v_lshlrev_b32 v2, 2, v2")
    for db in range(4):
        a.i("v_add_u32 v%d, %d, v%d" % (V_T1, 4 * db, V_T0))
        a.i("v_xor_b32 v%d, v%d, v2" % (V_T1, V_T1))
        a.i("v_lshlrev_b32 v%d, 4, v%d" % (V_T1, V_T1))
        a.i("v_add_u32 v%d, v3, v%d" % (V_VA + db, V_T1))
    for r in range(64):
        a.i("v_mov_b32 v%d, 0" % (V_O + r))
    a.i("v_mov_b32 v%d, %s" % (V_M, f32hex(-1e30)))
    a.i("v_mov_b32 v%d, 0" % V_L)
    a.i("s_mul_i32 s22, s17, 524288")
    a.i("s_lshl_b32 s23, s3, 10")
    a.i("s_add_u32 s22, s22, s23")

    def dma(buf):
        for j in range(4):
            a.i("s_add_u32 m0, s23, %d" % (buf * 65536 + j * 8192))
            a.i("s_add_u32 s24, s22, %d" % (j * 8192))
            a.i("buffer_load_dwordx4 v%d, s[4:7], s24 offen lds" % V_DK)
        for j in range(4):
            a.i("s_add_u32 m0, s23, %d" % (buf * 65536 + 32768 + j * 8192))
            a.i("s_add_u32 s24, s22, %d" % (j * 8192))
            a.i("buffer_load_dwordx4 v%d, s[8:11], s24 offen lds" % V_DV)
        a.i("s_add_u32 s22, s22, 32768")

    dma(0)
    a.i("s_mov_b32 s25, 0")
    C = 128 ** -0.5 * LOG2E
    a.i("s_mov_b32 s26, %s" % f32hex(C))
    a.label(".Lloop_attn")
    a.i("s_waitcnt vmcnt(0)")
    a.i("s_barrier")
    a.i("s_cmp_ge_u32 s25, 15")
    a.i("s_cbranch_scc1 .Lnodma_attn")
    a.i("s_bitcmp1_b32 s25, 0")
    a.i("s_cbranch_scc1 .Ldma0_attn")
    dma(1)
    a.i("s_branch .Lnodma_attn")
    a.label(".Ldma0_attn")
    dma(0)
    a.label(".Lnodma_attn")

    def kread(kb, half, st):
        for j in range(4):
            ks = half * 4 + j
            b = V_KF + st * 16 + 4 * j
            a.i("ds_read_b128 v[%d:%d], v%d offset:%d" % (b, b + 3, V_KA + ks, kb * 8192))

    seq = [(kb, h) for kb in range(4) for h in range(2)]
    kread(0, 0, 0)
    for n, (kb, h) in enumerate(seq):
        if n + 1 < len(seq):
            kread(seq[n + 1][0], seq[n + 1][1], (n + 1) % 2)
            a.i("s_waitcnt lgkmcnt(4)")
        else:
            a.i("s_waitcnt lgkmcnt(0)")
        for j in range(4):
            ks = h * 4 + j
            b = V_KF + (n % 2) * 16 + 4 * j
            s = V_S + 16 * kb
            c = "0" if ks == 0 else "v[%d:%d]" % (s, s + 15)
            a.i("v_mfma_f32_32x32x16_bf16 v[%d:%d], v[%d:%d], v[%d:%d], %s" % (
                s, s + 15, b, b + 3, V_Q + 4 * ks, V_Q + 4 * ks + 3, c))
    a.i("v_max3_f32 v%d, v%d, v%d, v%d" % (V_T0, V_S, V_S + 1, V_S + 2))
    for j in range(3, 63, 2):
        a.i("v_max3_f32 v%d, v%d, v%d, v%d" % (V_T0, V_T0, V_S + j, V_S + j + 1))
    a.i("v_max_f32 v%d, v%d, v%d" % (V_T0, V_T0, V_S + 63))
    a.i("v_mov_b32 v%d, v%d" % (V_T1, V_T0))
    a.i("v_permlane32_swap_b32 v%d, v%d" % (V_T0, V_T1))
    a.i("v_max3_f32 v%d, v%d, v%d, v%d" % (V_T0, V_T0, V_T1, V_M))
    a.i("v_sub_f32 v%d, v%d, v%d" % (V_AL, V_M, V_T0))
    a.i("v_mul_f32 v%d, %s, v%d" % (V_AL, f32hex(C), V_AL))
    a.i("v_exp_f32 v%d, v%d" % (V_AL, V_AL))
    a.i("v_mov_b32 v%d, v%d" % (V_M, V_T0))
    a.i("v_mul_f32 v%d, %s, v%d" % (V_MC, f32hex(-C), V_T0))
    a.i("v_mul_f32 v%d, v%d, v%d" % (V_L, V_L, V_AL))
    for j in range(64):
        a.i("v_fma_f32 v%d, v%d, s26, v%d" % (V_S + j, V_S + j, V_MC))
        a.i("v_exp_f32 v%d, v%d" % (V_S + j, V_S + j))
    for j in range(64):
        a.i("v_add_f32 v%d, v%d, v%d" % (V_L, V_L, V_S + j))
    for r in range(64):
        a.i("v_mul_f32 v%d, v%d, v%d" % (V_O + r, V_O + r, V_AL))
    for s8 in range(8):
        b = V_S + 8 * s8
        for j in range(4):
            a.i("v_cvt_pk_bf16_f32 v%d, v%d, v%d" % (b + j, b + 2 * j, b + 2 * j + 1))

    def vread(db, half, st):
        for j in range(4):
            s8 = half * 4 + j
            b = V_VF + st * 16 + 4 * j
            a.i("ds_read_b64_tr_b16 v[%d:%d], v%d offset:%d" % (b, b + 1, V_VA + db, s8 * 4096))
            a.i("ds_read_b64_tr_b16 v[%d:%d], v%d offset:%d" % (b + 2, b + 3, V_VA + db, s8 * 4096 + 2048))

    vread(0, 0, 0)
    for n, (db, h) in enumerate(seq):
        if n + 1 < len(seq):
            vread(seq[n + 1][0], seq[n + 1][1], (n + 1) % 2)
            a.i("s_waitcnt lgkmcnt(8)")
        else:
            a.i("s_waitcnt lgkmcnt(0)")
        for j in range(4):
            s8 = h * 4 + j
            b = V_VF + (n % 2) * 16 + 4 * j
            o = V_O + 16 * db
            p = V_S + 8 * s8
            a.i("v_mfma_f32_32x32x16_bf16 v[%d:%d], v[%d:%d], v[%d:%d], v[%d:%d]" % (
                o, o + 15, b, b + 3, p, p + 3, o, o + 15))
    for j in range(8):
        a.i("v_xor_b32 v%d, 0x10000, v%d" % (V_KA + j, V_KA + j))
    for j in range(4):
        a.i("v_xor_b32 v%d, 0x10000, v%d" % (V_VA + j, V_VA + j))
    a.i("s_add_u32 s25, s25, 1")
    a.i("s_cmp_lt_u32 s25, 16")
    a.i("s_cbranch_scc1 .Lloop_attn")
    srd_from_kernarg(a, 12, KA_WS, 0)
    a.i("v_mov_b32 v%d, v%d" % (V_T1, V_L))
    a.i("v_permlane32_swap_b32 v%d, v%d" % (V_L, V_T1))
    a.i("v_add_f32 v%d, v%d, v%d" % (V_L, V_L, V_T1))
    a.i("v_rcp_f32 v%d, v%d" % (V_L, V_L))
    a.i("v_and_b32 v2, 31, v1")
    a.i("v_add_u32 v2, s19, v2")
    a.i("v_lshlrev_b32 v2, 13, v2")
    a.i("v_lshrrev_b32 v3, 5, v1")
    a.i("v_lshlrev_b32 v3, 3, v3")
    a.i("v_add_u32 v2, v2, v3")
    a.i("s_waitcnt lgkmcnt(0)")
    srd_finish(a, 12, 2048 * 8192, WS_O)
    for db in range(4):
        for g4 in range(4):
            o = V_O + 16 * db + 4 * g4
            for j in range(4):
                a.i("v_mul_f32 v%d, v%d, v%d" % (o + j, o + j, V_L))
            a.i("v_cvt_pk_bf16_f32 v%d, v%d, v%d" % (o, o, o + 1))
            a.i("v_cvt_pk_bf16_f32 v%d, v%d, v%d" % (o + 1, o + 2, o + 3))
            a.i("buffer_store_dwordx2 v[%d:%d], v2, s[12:15], s20 offen offset:%d" % (o, o + 1, (32 * db + 8 * g4) * 2))
    end(k)
    return k
```

```python
import sys

sys.path.insert(0, "gen")
from asmlib import Asm

OUT = "adaLN_cond__mha_block_cached__mixer_gmlp__prompt.s"

WS_MOD = 0
WS_H = 0x00100000
WS_Q = 0x00400000
WS_O = 0x01400000
WS_X1 = 0x02400000
WS_H2 = 0x02600000
WS_Z = 0x02800000
WS_Z2N = 0x03000000
WS_T = 0x03400000

KA_X, KA_K, KA_V, KA_WQ, KA_WO, KA_WIN, KA_WSP, KA_BSP, KA_WOUT, KA_C, KA_WMOD, KA_OUT, KA_WS = (
    0, 8, 16, 24, 32, 48, 56, 64, 72, 80, 88, 96, 112)

LOG2E = 1.4426950408889634


def f32hex(x):
    import struct
    return "0x%08x" % struct.unpack("<I", struct.pack("<f", x))[0]


class Kern:
    def __init__(self, name, grid, block, lds, vgpr, sgpr=102):
        self.name, self.grid, self.block, self.lds, self.vgpr, self.sgpr = name, grid, block, lds, vgpr, sgpr
        self.a = Asm()


def begin(k):
    a = k.a
    a.raw(".globl %s" % k.name)
    a.raw(".p2align 8")
    a.raw(".type %s,@function" % k.name)
    a.raw(k.name + ":")


def end(k):
    a = k.a
    a.label(".Lend_" + k.name)
    a.i("s_endpgm")


def srd_from_kernarg(a, sreg, karg_off, nbytes):
    a.i("s_load_dwordx2 s[%d:%d], s[0:1], %d" % (sreg, sreg + 1, karg_off))


def srd_finish(a, sreg, nbytes, add_off=0):
    if add_off:
        a.i("s_add_u32 s%d, s%d, 0x%x" % (sreg, sreg, add_off))
        a.i("s_addc_u32 s%d, s%d, 0" % (sreg + 1, sreg + 1))
    a.i("s_and_b32 s%d, s%d, 0xffff" % (sreg + 1, sreg + 1))
    a.i("s_mov_b32 s%d, 0x%x" % (sreg + 2, nbytes))
    a.i("s_mov_b32 s%d, 0x00020000" % (sreg + 3))


def bf16r(a, vd, vs):
    a.i("v_cvt_pk_bf16_f32 v%d, v%d, v%d" % (vd, vs, vs))
    a.i("v_lshlrev_b32 v%d, 16, v%d" % (vd, vd))


def wave_sum_to_sgpr(a, v, s):
    for m in ("quad_perm:[1,0,3,2]", "quad_perm:[2,3,0,1]", "row_half_mirror", "row_mirror"):
        a.i("v_add_f32_dpp v%d, v%d, v%d %s row_mask:0xf bank_mask:0xf" % (v, v, v, m))
    a.i("v_add_f32_dpp v%d, v%d, v%d row_bcast:15 row_mask:0xa bank_mask:0xf" % (v, v, v))
    a.i("v_add_f32_dpp v%d, v%d, v%d row_bcast:31 row_mask:0xc bank_mask:0xf" % (v, v, v))
    a.i("v_readlane_b32 s%d, v%d, 63" % (s, v))


def gen_mod():
    k = Kern("mod_kernel", (24, 1, 1), (256, 1, 1), 4096, 168)
    a = k.a
    begin(k)
    a.i("s_cmp_ge_u32 s2, 24")
    a.i("s_cbranch_scc1 .Lend_mod_kernel")
    srd_from_kernarg(a, 4, KA_C, 0)
    srd_from_kernarg(a, 8, KA_WMOD, 0)
    srd_from_kernarg(a, 12, KA_WS, 0)
    a.i("v_and_b32 v1, 63, v0")
    a.i("v_lshrrev_b32 v2, 6, v0")
    a.i("v_readfirstlane_b32 s3, v2")
    a.i("s_waitcnt lgkmcnt(0)")
    srd_finish(a, 4, 1024)
    srd_finish(a, 8, 512 * 6144)
    srd_finish(a, 12, 3072 * 4, WS_MOD)
    a.i("s_lshl_b32 s16, s3, 8")
    a.i("v_lshlrev_b32 v3, 1, v1")
    a.i("buffer_load_ushort v4, v3, s[4:7], s16 offen")
    a.i("buffer_load_ushort v5, v3, s[4:7], s16 offen offset:128")
    a.i("s_lshl_b32 s17, s2, 8")
    a.i("v_lshlrev_b32 v6, 2, v1")
    a.i("v_add_u32 v6, s17, v6")
    a.i("s_mul_i32 s18, s3, %d" % (128 * 6144))
    for kk in range(128):
        a.i("buffer_load_dword v%d, v6, s[8:11], s18 offen" % (32 + kk))
        a.i("s_add_u32 s18, s18, 6144")
    a.i("s_waitcnt vmcnt(0)")
    for v in (4, 5):
        a.i("v_lshlrev_b32 v%d, 16, v%d" % (v, v))
        a.i("v_mul_f32 v7, %s, v%d" % (f32hex(-LOG2E), v))
        a.i("v_exp_f32 v7, v7")
        a.i("v_add_f32 v7, 1.0, v7")
        a.i("v_rcp_f32 v7, v7")
        a.i("v_mul_f32 v%d, v%d, v7" % (v, v))
        bf16r(a, v, v)
    a.i("v_mov_b32 v8, 0")
    a.i("v_mov_b32 v9, 0")
    for g in range(8):
        for j in range(16):
            kk = g * 16 + j
            a.i("v_readlane_b32 s%d, v%d, %d" % (20 + j, 4 + kk // 64, kk % 64))
        for j in range(16):
            kk = g * 16 + j
            a.i("v_lshlrev_b32 v10, 16, v%d" % (32 + kk))
            a.i("v_and_b32 v11, 0xffff0000, v%d" % (32 + kk))
            a.i("v_fmac_f32 v8, s%d, v10" % (20 + j))
            a.i("v_fmac_f32 v9, s%d, v11" % (20 + j))
    a.i("v_lshlrev_b32 v12, 3, v0")
    a.i("ds_write_b64 v12, v[8:9]")
    a.i("s_waitcnt lgkmcnt(0)")
    a.i("s_barrier")
    a.i("s_cmp_lg_u32 s3, 0")
    a.i("s_cbranch_scc1 .Lend_mod_kernel")
    a.i("ds_read_b64 v[14:15], v12 offset:512")
    a.i("ds_read_b64 v[16:17], v12 offset:1024")
    a.i("ds_read_b64 v[18:19], v12 offset:1536")
    a.i("s_waitcnt lgkmcnt(0)")
    a.i("v_add_f32 v8, v8, v14")
    a.i("v_add_f32 v9, v9, v15")
    a.i("v_add_f32 v16, v16, v18")
    a.i("v_add_f32 v17, v17, v19")
    a.i("v_add_f32 v8, v8, v16")
    a.i("v_add_f32 v9, v9, v17")
    bf16r(a, 8, 8)
    bf16r(a, 9, 9)
    a.i("v_lshlrev_b32 v6, 1, v6")
    a.i("buffer_store_dwordx2 v[8:9], v6, s[12:15], 0 offen")
    end(k)
    return k


def ln_finish_stats(a, s_sum, s_ss_unused=None):
    pass


def gen_ln512(name, src_karg, src_ws, dst_ws, scale_idx, shift_idx):
    k = Kern(name, (512, 1, 1), (256, 1, 1), 0, 64)
    a = k.a
    begin(k)
    a.i("s_cmp_ge_u32 s2, 512")
    a.i("s_cbranch_scc1 .Lend_" + name)
    if src_karg is not None:
        srd_from_kernarg(a, 4, src_karg, 0)
    else:
        srd_from_kernarg(a, 4, KA_WS, 0)
    srd_from_kernarg(a, 8, KA_WS, 0)
    srd_from_kernarg(a, 12, KA_WS, 0)
    a.i("v_and_b32 v1, 63, v0")
    a.i("v_lshrrev_b32 v2, 6, v0")
    a.i("v_readfirstlane_b32 s3, v2")
    a.i("s_waitcnt lgkmcnt(0)")
    srd_finish(a, 4, 2048 * 1024, 0 if src_karg is not None else src_ws)
    srd_finish(a, 8, 2048 * 1024, dst_ws)
    srd_finish(a, 12, 3072 * 4, WS_MOD)
    a.i("s_lshl_b32 s16, s2, 2")
    a.i("s_add_u32 s16, s16, s3")
    a.i("s_lshl_b32 s16, s16, 10")
    a.i("v_lshlrev_b32 v3, 4, v1")
    a.i("buffer_load_dwordx4 v[4:7], v3, s[4:7], s16 offen")
    a.i("v_lshlrev_b32 v8, 5, v1")
    a.i("s_mov_b32 s17, %d" % (scale_idx * 4))
    a.i("s_mov_b32 s18, %d" % (shift_idx * 4))
    a.i("buffer_load_dwordx4 v[40:43], v8, s[12:15], s17 offen")
    a.i("buffer_load_dwordx4 v[44:47], v8, s[12:15], s17 offen offset:16")
    a.i("buffer_load_dwordx4 v[48:51], v8, s[12:15], s18 offen")
    a.i("buffer_load_dwordx4 v[52:55], v8, s[12:15], s18 offen offset:16")
    a.i("s_waitcnt vmcnt(4)")
    for j in range(4):
        a.i("v_lshlrev_b32 v%d, 16, v%d" % (16 + 2 * j, 4 + j))
        a.i("v_and_b32 v%d, 0xffff0000, v%d" % (17 + 2 * j, 4 + j))
    ln_core(a, 8, 16, 512)
    a.i("s_waitcnt vmcnt(0)")
    for j in range(8):
        a.i("v_add_f32 v%d, 1.0, v%d" % (40 + j, 40 + j))
        bf16r(a, 40 + j, 40 + j)
    for j in range(8):
        a.i("v_mul_f32 v%d, v%d, v%d" % (16 + j, 16 + j, 40 + j))
        bf16r(a, 16 + j, 16 + j)
        a.i("v_add_f32 v%d, v%d, v%d" % (16 + j, 16 + j, 48 + j))
    for j in range(4):
        a.i("v_cvt_pk_bf16_f32 v%d, v%d, v%d" % (4 + j, 16 + 2 * j, 17 + 2 * j))
    a.i("buffer_store_dwordx4 v[4:7], v3, s[8:11], s16 offen")
    end(k)
    return k


def ln_core(a, n, vx, ncols):
    a.i("v_add_f32 v30, v%d, v%d" % (vx, vx + 1))
    for j in range(2, n):
        a.i("v_add_f32 v30, v30, v%d" % (vx + j))
    wave_sum_to_sgpr(a, 30, 20)
    a.i("v_mov_b32 v31, s20")
    a.i("v_mul_f32 v31, %s, v31" % f32hex(1.0 / ncols))
    a.i("v_sub_f32 v32, v%d, v31" % vx)
    a.i("v_mul_f32 v30, v32, v32")
    for j in range(1, n):
        a.i("v_sub_f32 v32, v%d, v31" % (vx + j))
        a.i("v_fmac_f32 v30, v32, v32")
    wave_sum_to_sgpr(a, 30, 21)
    a.i("v_mov_b32 v32, s21")
    a.i("v_mul_f32 v32, %s, v32" % f32hex(1.0 / ncols))
    bf16r(a, 31, 31)
    bf16r(a, 32, 32)
    a.i("v_add_f32 v32, %s, v32" % f32hex(1e-5))
    bf16r(a, 32, 32)
    a.i("v_sqrt_f32 v32, v32")
    bf16r(a, 32, 32)
    a.i("v_rcp_f32 v32, v32")
    for j in range(n):
        a.i("v_sub_f32 v%d, v%d, v31" % (vx + j, vx + j))
        bf16r(a, vx + j, vx + j)
        a.i("v_mul_f32 v%d, v%d, v32" % (vx + j, vx + j))
        bf16r(a, vx + j, vx + j)


def gen_ln896():
    name = "ln3_kernel"
    k = Kern(name, (512, 1, 1), (256, 1, 1), 0, 64)
    a = k.a
    begin(k)
    a.i("s_cmp_ge_u32 s2, 512")
    a.i("s_cbranch_scc1 .Lend_" + name)
    srd_from_kernarg(a, 4, KA_WS, 0)
    srd_from_kernarg(a, 8, KA_WS, 0)
    a.i("v_and_b32 v1, 63, v0")
    a.i("v_lshrrev_b32 v2, 6, v0")
    a.i("v_readfirstlane_b32 s3, v2")
    a.i("s_waitcnt lgkmcnt(0)")
    srd_finish(a, 4, 2048 * 3584, WS_Z)
    srd_finish(a, 8, 2048 * 1792, WS_Z2N)
    a.i("s_lshl_b32 s16, s2, 2")
    a.i("s_add_u32 s16, s16, s3")
    a.i("s_mul_i32 s17, s16, 3584")
    a.i("s_add_u32 s17, s17, 1792")
    a.i("s_mul_i32 s18, s16, 1792")
    a.i("v_mul_u32_u24 v3, 28, v1")
    a.i("buffer_load_dwordx4 v[4:7], v3, s[4:7], s17 offen")
    a.i("buffer_load_dwordx3 v[8:10], v3, s[4:7], s17 offen offset:16")
    a.i("s_waitcnt vmcnt(0)")
    for j in range(7):
        a.i("v_lshlrev_b32 v%d, 16, v%d" % (40 + 2 * j, 4 + j))
        a.i("v_and_b32 v%d, 0xffff0000, v%d" % (41 + 2 * j, 4 + j))
    ln_core(a, 14, 40, 896)
    for j in range(7):
        a.i("v_cvt_pk_bf16_f32 v%d, v%d, v%d" % (4 + j, 40 + 2 * j, 41 + 2 * j))
    a.i("buffer_store_dwordx4 v[4:7], v3, s[8:11], s18 offen")
    a.i("buffer_store_dwordx3 v[8:10], v3, s[8:11], s18 offen offset:16")
    end(k)
    return k


def gen_gemm(name, M, N, K, BM, BN, x_src, w_src, epi):
    TM, TN = BM // 64, BN // 64
    NWM, NWN = M // BM, N // BN
    NWG = NWM * NWN
    XRS, WRS = K * 2, N * 2
    RS = BN * 2
    XT, WT = BM * 128, 64 * RS
    STAGE = XT + WT
    LDS = 2 * STAGE
    NKT = K // 64
    assert NKT % 2 == 0
    V_ACC = 24
    nacc = TM * TN * 16
    V_XF = V_ACC + nacc
    V_WF = V_XF + 2 * TM * 4
    V_END = V_WF + 2 * TN * 4
    V_XA = 2
    V_WA = 6
    V_DX, V_DW = 10, 11
    nv = max(V_END, 64 + 16) + 24
    nv = (nv + 7) // 8 * 8
    k = Kern(name, (NWG, 1, 1), (256, 1, 1), LDS, nv)
    a = k.a
    begin(k)
    a.i("s_cmp_ge_u32 s2, %d" % NWG)
    a.i("s_cbranch_scc1 .Lend_" + name)
    srd_from_kernarg(a, 4, x_src[1] if x_src[0] == "ka" else KA_WS, 0)
    srd_from_kernarg(a, 8, w_src[1] if w_src[0] == "ka" else KA_WS, 0)
    a.i("v_and_b32 v1, 63, v0")
    a.i("v_lshrrev_b32 v12, 6, v0")
    a.i("v_readfirstlane_b32 s3, v12")
    a.i("s_mov_b32 s16, s2")
    a.i("s_mul_hi_u32 s17, s16, 0x%x" % ((1 << 32) // NWN + 1))
    a.i("s_mul_i32 s18, s17, %d" % NWN)
    a.i("s_sub_u32 s18, s16, s18")
    a.i("s_mul_i32 s19, s17, %d" % BM)
    a.i("s_mul_i32 s20, s18, %d" % BN)
    a.i("s_and_b32 s21, s3, 1")
    a.i("s_lshr_b32 s22, s3, 1")
    a.i("s_waitcnt lgkmcnt(0)")
    srd_finish(a, 4, x_src[2], 0 if x_src[0] == "ka" else x_src[1])
    srd_finish(a, 8, w_src[2], 0 if w_src[0] == "ka" else w_src[1])
    a.i("v_lshrrev_b32 v12, 3, v1")
    a.i("v_mul_u32_u24 v%d, %d, v12" % (V_DX, XRS))
    a.i("v_lshrrev_b32 v13, 4, v1")
    a.i("s_lshl_b32 s23, s21, 2")
    a.i("v_add_u32 v13, s23, v13")
    a.i("v_and_b32 v13, 7, v13")
    a.i("v_and_b32 v14, 7, v1")
    a.i("v_xor_b32 v14, v14, v13")
    a.i("v_lshlrev_b32 v14, 4, v14")
    a.i("v_add_u32 v%d, v%d, v14" % (V_DX, V_DX))
    if RS >= 256:
        rows_per = 1024 // RS
        cpr = RS // 16
        lg = cpr.bit_length() - 1
        a.i("v_lshrrev_b32 v12, %d, v1" % lg)
        a.i("v_mul_u32_u24 v%d, %d, v12" % (V_DW, WRS))
        a.i("v_and_b32 v13, 3, v12")
        a.i("v_lshlrev_b32 v13, 2, v13")
        assert rows_per == 4 or rows_per == 2
        a.i("v_and_b32 v14, %d, v1" % (cpr - 1))
        a.i("v_xor_b32 v14, v14, v13")
        a.i("v_lshlrev_b32 v14, 4, v14")
        a.i("v_add_u32 v%d, v%d, v14" % (V_DW, V_DW))
        assert rows_per == 4, "RS=512 needs per-instr parity handling"
    else:
        assert RS == 128
        rows_per = 8
        a.i("v_lshrrev_b32 v12, 3, v1")
        a.i("v_mul_u32_u24 v%d, %d, v12" % (V_DW, WRS))
        a.i("v_lshrrev_b32 v13, 1, v12")
        a.i("v_and_b32 v13, 1, v13")
        a.i("v_lshlrev_b32 v13, 2, v13")
        a.i("v_and_b32 v14, 7, v1")
        a.i("v_xor_b32 v14, v14, v13")
        a.i("v_lshlrev_b32 v14, 4, v14")
        a.i("v_add_u32 v%d, v%d, v14" % (V_DW, V_DW))
    a.i("v_and_b32 v12, 31, v1")
    a.i("s_mul_i32 s23, s21, %d" % (BM // 2))
    a.i("v_add_u32 v12, s23, v12")
    a.i("v_lshrrev_b32 v13, 1, v12")
    a.i("v_and_b32 v13, 7, v13")
    a.i("v_lshrrev_b32 v14, 5, v1")
    a.i("v_lshlrev_b32 v12, 7, v12")
    for ks in range(4):
        a.i("v_add_u32 v15, %d, v14" % (2 * ks))
        a.i("v_xor_b32 v15, v15, v13")
        a.i("v_lshlrev_b32 v15, 4, v15")
        a.i("v_add_u32 v%d, v12, v15" % (V_XA + ks))
    a.i("v_lshrrev_b32 v12, 2, v1")
    a.i("v_and_b32 v12, 3, v12")
    a.i("v_lshrrev_b32 v13, 5, v1")
    a.i("v_lshlrev_b32 v13, 3, v13")
    a.i("v_add_u32 v13, v13, v12")
    a.i("v_mul_u32_u24 v13, %d, v13" % RS)
    a.i("v_lshrrev_b32 v14, 4, v1")
    a.i("v_and_b32 v14, 1, v14")
    a.i("v_lshlrev_b32 v14, 1, v14")
    a.i("v_and_b32 v15, 3, v1")
    a.i("v_lshrrev_b32 v16, 1, v15")
    a.i("v_add_u32 v14, v14, v16")
    a.i("v_and_b32 v15, 1, v15")
    a.i("v_lshlrev_b32 v15, 3, v15")
    a.i("v_add_u32 v13, v13, v15")
    if RS >= 256:
        a.i("v_lshlrev_b32 v12, 2, v12")
    else:
        a.i("v_lshrrev_b32 v12, 1, v12")
        a.i("v_lshlrev_b32 v12, 2, v12")
    for bn in range(TN):
        a.i("s_mul_i32 s23, s22, %d" % (BN // 16))
        a.i("s_add_u32 s23, s23, %d" % (4 * bn))
        a.i("v_add_u32 v15, s23, v14")
        a.i("v_xor_b32 v15, v15, v12")
        a.i("v_lshlrev_b32 v15, 4, v15")
        a.i("v_add_u32 v%d, v13, v15" % (V_WA + bn))
    for r in range(nacc):
        a.i("v_mov_b32 v%d, 0" % (V_ACC + r))
    a.i("s_lshl_b32 s23, s3, 3")
    a.i("s_add_u32 s23, s23, s19")
    a.i("s_mul_i32 s24, s23, %d" % XRS)
    a.i("s_mul_i32 s25, s3, %d" % (rows_per * WRS))
    a.i("s_lshl_b32 s23, s20, 1")
    a.i("s_add_u32 s25, s25, s23")
    nxd, nwd = BM // 32, (64 // rows_per) // 4

    def dma(buf):
        for j in range(nxd):
            a.i("s_add_u32 m0, s27, %d" % (buf * STAGE + (4 * j) * 1024))
            a.i("s_add_u32 s26, s24, %d" % (j * 32 * XRS))
            a.i("buffer_load_dwordx4 v%d, s[4:7], s26 offen lds" % V_DX)
        for j in range(nwd):
            a.i("s_add_u32 m0, s27, %d" % (buf * STAGE + XT + (4 * j) * 1024))
            a.i("s_add_u32 s26, s25, %d" % (j * 4 * rows_per * WRS))
            a.i("buffer_load_dwordx4 v%d, s[8:11], s26 offen lds" % V_DW)
        a.i("s_add_u32 s24, s24, 128")
        a.i("s_add_u32 s25, s25, %d" % (64 * WRS))

    a.i("s_lshl_b32 s27, s3, 10")
    dma(0)
    a.i("s_mov_b32 s28, 0")

    def frag_reads(buf, ks, st):
        for bm in range(TM):
            a.i("ds_read_b128 v[%d:%d], v%d offset:%d" % (
                V_XF + (st * TM + bm) * 4, V_XF + (st * TM + bm) * 4 + 3, V_XA + ks, buf * STAGE + bm * 4096))
        for bn in range(TN):
            b = V_WF + (st * TN + bn) * 4
            off = buf * STAGE + XT + 16 * ks * RS
            a.i("ds_read_b64_tr_b16 v[%d:%d], v%d offset:%d" % (b, b + 1, V_WA + bn, off))
            a.i("ds_read_b64_tr_b16 v[%d:%d], v%d offset:%d" % (b + 2, b + 3, V_WA + bn, off + 4 * RS))

    def mfmas(st):
        for bn in range(TN):
            for bm in range(TM):
                acc = V_ACC + 16 * (bn * TM + bm)
                a.i("v_mfma_f32_32x32x16_bf16 v[%d:%d], v[%d:%d], v[%d:%d], v[%d:%d]" % (
                    acc, acc + 15, V_WF + (st * TN + bn) * 4, V_WF + (st * TN + bn) * 4 + 3,
                    V_XF + (st * TM + bm) * 4, V_XF + (st * TM + bm) * 4 + 3, acc, acc + 15))

    nrd = TM + 2 * TN
    a.label(".Lloop_" + name)
    for buf in range(2):
        a.i("s_waitcnt vmcnt(0)")
        a.i("s_barrier")
        if buf == 1:
            a.i("s_cmp_ge_u32 s28, %d" % (NKT - 2))
            a.i("s_cbranch_scc1 .Lnodma_" + name)
        dma(1 - buf)
        if buf == 1:
            a.label(".Lnodma_" + name)
        frag_reads(buf, 0, 0)
        for ks in range(4):
            if ks < 3:
                frag_reads(buf, ks + 1, (ks + 1) % 2)
                a.i("s_waitcnt lgkmcnt(%d)" % nrd)
            else:
                a.i("s_waitcnt lgkmcnt(0)")
            mfmas(ks % 2)
    a.i("s_add_u32 s28, s28, 2")
    a.i("s_cmp_lt_u32 s28, %d" % NKT)
    a.i("s_cbranch_scc1 .Lloop_" + name)

    T = V_END
    a.i("v_and_b32 v12, 31, v1")
    a.i("s_mul_i32 s23, s21, %d" % (BM // 2))
    a.i("s_add_u32 s23, s23, s19")
    a.i("v_add_u32 v12, s23, v12")
    a.i("v_lshrrev_b32 v13, 5, v1")
    a.i("v_lshlrev_b32 v13, 2, v13")
    a.i("s_mul_i32 s23, s22, %d" % (BN // 2))
    a.i("s_add_u32 s23, s23, s20")
    a.i("v_add_u32 v13, s23, v13")

    def out_srd(ws_off, nbytes, ka=None):
        srd_from_kernarg(a, 12, KA_WS if ka is None else ka, 0)
        a.i("s_waitcnt lgkmcnt(0)")
        srd_finish(a, 12, nbytes, ws_off if ka is None else 0)

    if epi == "q":
        ORS = N * 2
        out_srd(WS_Q, M * ORS)
        a.i("v_mul_u32_u24 v14, %d, v12" % ORS)
        a.i("v_lshlrev_b32 v15, 1, v13")
        a.i("v_add_u32 v14, v14, v15")
        for bm in range(TM):
            a.i("s_mov_b32 s23, %d" % (bm * 32 * ORS))
            for bn in range(TN):
                for g4 in range(4):
                    acc = V_ACC + 16 * (bn * TM + bm) + 4 * g4
                    a.i("v_cvt_pk_bf16_f32 v%d, v%d, v%d" % (T, acc, acc + 1))
                    a.i("v_cvt_pk_bf16_f32 v%d, v%d, v%d" % (T + 1, acc + 2, acc + 3))
                    a.i("buffer_store_dwordx2 v[%d:%d], v14, s[12:15], s23 offen offset:%d" % (
                        T, T + 1, (bn * 32 + 8 * g4) * 2))
    elif epi in ("x1", "out"):
        ORS = N * 2
        gidx = 1024 if epi == "x1" else 2560
        srd_from_kernarg(a, 16, KA_WS, 0)
        if epi == "x1":
            srd_from_kernarg(a, 28, KA_X, 0)
            out_srd(WS_X1, M * ORS)
            srd_finish(a, 28, M * ORS)
        else:
            srd_from_kernarg(a, 28, KA_WS, 0)
            out_srd(0, M * ORS, KA_OUT)
            srd_finish(a, 28, M * ORS, WS_X1)
        srd_finish(a, 16, 3072 * 4, WS_MOD)
        a.i("v_mul_u32_u24 v14, %d, v12" % ORS)
        a.i("v_lshlrev_b32 v15, 1, v13")
        a.i("v_add_u32 v14, v14, v15")
        a.i("v_lshlrev_b32 v15, 2, v13")
        a.i("s_mov_b32 s24, %d" % (gidx * 4))
        for bm in range(TM):
            a.i("s_mov_b32 s23, %d" % (bm * 32 * ORS))
            for bn in range(TN):
                for g4 in range(4):
                    acc = V_ACC + 16 * (bn * TM + bm) + 4 * g4
                    o = (bn * 32 + 8 * g4)
                    a.i("buffer_load_dwordx4 v[%d:%d], v15, s[16:19], s24 offen offset:%d" % (
                        T + 4, T + 7, o * 4))
                    a.i("buffer_load_dwordx2 v[%d:%d], v14, s[28:31], s23 offen offset:%d" % (T + 8, T + 9, o * 2))
                    a.i("s_waitcnt vmcnt(0)")
                    for j in range(4):
                        bf16r(a, T + j, acc + j)
                        a.i("v_mul_f32 v%d, v%d, v%d" % (T + j, T + j, T + 4 + j))
                        bf16r(a, T + j, T + j)
                    a.i("v_lshlrev_b32 v%d, 16, v%d" % (T + 4, T + 8))
                    a.i("v_and_b32 v%d, 0xffff0000, v%d" % (T + 5, T + 8))
                    a.i("v_lshlrev_b32 v%d, 16, v%d" % (T + 6, T + 9))
                    a.i("v_and_b32 v%d, 0xffff0000, v%d" % (T + 7, T + 9))
                    for j in range(4):
                        a.i("v_add_f32 v%d, v%d, v%d" % (T + j, T + j, T + 4 + j))
                    a.i("v_cvt_pk_bf16_f32 v%d, v%d, v%d" % (T, T, T + 1))
                    a.i("v_cvt_pk_bf16_f32 v%d, v%d, v%d" % (T + 1, T + 2, T + 3))
                    a.i("buffer_store_dwordx2 v[%d:%d], v14, s[12:15], s23 offen offset:%d" % (T, T + 1, o * 2))
    elif epi == "gelu":
        ORS = N * 2
        out_srd(WS_Z, M * ORS)
        a.i("v_mul_u32_u24 v14, %d, v12" % ORS)
        a.i("v_lshlrev_b32 v15, 1, v13")
        a.i("v_add_u32 v14, v14, v15")
        c1 = f32hex(-2.0 * 0.7978845608028654 * LOG2E)
        c2 = f32hex(-2.0 * 0.7978845608028654 * 0.044715 * LOG2E)
        for bm in range(TM):
            a.i("s_mov_b32 s23, %d" % (bm * 32 * ORS))
            for bn in range(TN):
                for g4 in range(4):
                    acc = V_ACC + 16 * (bn * TM + bm) + 4 * g4
                    for j in range(4):
                        bf16r(a, T + j, acc + j)
                        a.i("v_mul_f32 v%d, v%d, v%d" % (T + 4 + j, T + j, T + j))
                        a.i("v_mul_f32 v%d, %s, v%d" % (T + 4 + j, c2, T + 4 + j))
                        a.i("v_add_f32 v%d, %s, v%d" % (T + 4 + j, c1, T + 4 + j))
                        a.i("v_mul_f32 v%d, v%d, v%d" % (T + 4 + j, T + 4 + j, T + j))
                        a.i("v_exp_f32 v%d, v%d" % (T + 4 + j, T + 4 + j))
                        a.i("v_add_f32 v%d, 1.0, v%d" % (T + 4 + j, T + 4 + j))
                        a.i("v_rcp_f32 v%d, v%d" % (T + 4 + j, T + 4 + j))
                        a.i("v_mul_f32 v%d, v%d, v%d" % (T + j, T + j, T + 4 + j))
                    a.i("v_cvt_pk_bf16_f32 v%d, v%d, v%d" % (T, T, T + 1))
                    a.i("v_cvt_pk_bf16_f32 v%d, v%d, v%d" % (T + 1, T + 2, T + 3))
                    a.i("buffer_store_dwordx2 v[%d:%d], v14, s[12:15], s23 offen offset:%d" % (
                        T, T + 1, (bn * 32 + 8 * g4) * 2))
    elif epi == "sp":
        ORS = N * 2
        ZRS = 3584
        srd_from_kernarg(a, 16, KA_BSP, 0)
        srd_from_kernarg(a, 28, KA_WS, 0)
        out_srd(WS_T, M * ORS)
        srd_finish(a, 16, 4096)
        srd_finish(a, 28, M * ZRS, WS_Z)
        a.i("v_mul_u32_u24 v14, %d, v12" % ORS)
        a.i("v_lshlrev_b32 v15, 1, v13")
        a.i("v_add_u32 v14, v14, v15")
        a.i("v_mul_u32_u24 v16, %d, v12" % ZRS)
        a.i("v_add_u32 v16, v16, v15")
        a.i("v_lshlrev_b32 v17, 1, v12")
        for bm in range(TM):
            a.i("s_mov_b32 s23, %d" % (bm * 32 * ORS))
            a.i("s_mov_b32 s24, %d" % (bm * 32 * ZRS))
            a.i("buffer_load_ushort v%d, v17, s[16:19], 0 offen offset:%d" % (T + 10, bm * 64))
            a.i("s_waitcnt vmcnt(0)")
            a.i("v_lshlrev_b32 v%d, 16, v%d" % (T + 10, T + 10))
            for bn in range(TN):
                for g4 in range(4):
                    acc = V_ACC + 16 * (bn * TM + bm) + 4 * g4
                    o = (bn * 32 + 8 * g4)
                    a.i("buffer_load_dwordx2 v[%d:%d], v16, s[28:31], s24 offen offset:%d" % (T + 8, T + 9, o * 2))
                    for j in range(4):
                        bf16r(a, T + j, acc + j)
                        a.i("v_add_f32 v%d, v%d, v%d" % (T + j, T + j, T + 10))
                        bf16r(a, T + j, T + j)
                    a.i("s_waitcnt vmcnt(0)")
                    a.i("v_lshlrev_b32 v%d, 16, v%d" % (T + 4, T + 8))
                    a.i("v_and_b32 v%d, 0xffff0000, v%d" % (T + 5, T + 8))
                    a.i("v_lshlrev_b32 v%d, 16, v%d" % (T + 6, T + 9))
                    a.i("v_and_b32 v%d, 0xffff0000, v%d" % (T + 7, T + 9))
                    for j in range(4):
                        a.i("v_mul_f32 v%d, v%d, v%d" % (T + j, T + j, T + 4 + j))
                    a.i("v_cvt_pk_bf16_f32 v%d, v%d, v%d" % (T, T, T + 1))
                    a.i("v_cvt_pk_bf16_f32 v%d, v%d, v%d" % (T + 1, T + 2, T + 3))
                    a.i("buffer_store_dwordx2 v[%d:%d], v14, s[12:15], s23 offen offset:%d" % (T, T + 1, o * 2))
    end(k)
    return k


def assemble(kerns):
    head = []
    for k in kerns:
        head.append("; @launch kernel=%s grid=(%d,%d,%d) block=(%d,%d,%d) lds=%d" % (
            (k.name,) + k.grid + k.block + (k.lds,)))
    s = "\n".join(head) + "\n"
    s += '.amdgcn_target "amdgcn-amd-amdhsa--gfx950"\n.text\n'
    seen = set()
    for k in kerns:
        if k.name in seen:
            continue
        seen.add(k.name)
        s += k.a.text()
    s += '.section .rodata,"a"\n'
    seen = set()
    for k in kerns:
        if k.name in seen:
            continue
        seen.add(k.name)
        s += ".p2align 6\n.amdhsa_kernel %s\n" % k.name
        s += "  .amdhsa_next_free_vgpr %d\n" % k.vgpr
        s += "  .amdhsa_next_free_sgpr %d\n" % k.sgpr
        s += "  .amdhsa_accum_offset %d\n" % min(256, (k.vgpr + 3) // 4 * 4)
        s += "  .amdhsa_group_segment_fixed_size 0\n  .amdhsa_kernarg_size 120\n"
        s += "  .amdhsa_user_sgpr_count 2\n  .amdhsa_user_sgpr_kernarg_segment_ptr 1\n"
        s += "  .amdhsa_system_sgpr_workgroup_id_x 1\n.end_amdhsa_kernel\n"
    return s


def main():
    from attn import gen_attn
    ks = [
        gen_mod(),
        gen_ln512("ln1_kernel", KA_X, None, WS_H, 512, 0),
        gen_gemm("gemmq_kernel", 2048, 4096, 512, 128, 128, ("ws", WS_H, 2048 * 1024), ("ka", KA_WQ, 512 * 8192), "q"),
        gen_attn(),
        gen_gemm("gemmo_kernel", 2048, 512, 4096, 64, 64, ("ws", WS_O, 2048 * 8192), ("ka", KA_WO, 4096 * 1024), "x1"),
        gen_ln512("ln2_kernel", None, WS_X1, WS_H2, 2048, 1536),
        gen_gemm("gemmin_kernel", 2048, 1792, 512, 128, 128, ("ws", WS_H2, 2048 * 1024), ("ka", KA_WIN, 512 * 3584),
                 "gelu"),
        gen_ln896(),
        gen_gemm("gemmsp_kernel", 2048, 896, 2048, 64, 128, ("ka", KA_WSP, 2048 * 4096), ("ws", WS_Z2N, 2048 * 1792),
                 "sp"),
        gen_gemm("gemmout_kernel", 2048, 512, 896, 64, 64, ("ws", WS_T, 2048 * 1792), ("ka", KA_WOUT, 896 * 1024),
                 "out"),
    ]
    open(OUT, "w").write(assemble(ks))
    print("written", OUT)


if __name__ == "__main__":
    main()
```

```python
import sys
sys.path.insert(0, "gen")
from gen import *


def gen_attn():
    name = "attn_kernel"
    LDS = 131072
    k = Kern(name, (256, 1, 1), (512, 1, 1), LDS, 256)
    a = k.a
    begin(k)
    a.i("s_cmp_ge_u32 s2, 256")
    a.i("s_cbranch_scc1 .Lend_" + name)
    srd_from_kernarg(a, 4, KA_K, 0)
    srd_from_kernarg(a, 8, KA_V, 0)
    srd_from_kernarg(a, 12, KA_WS, 0)
    a.i("v_and_b32 v1, 63, v0")
    a.i("v_lshrrev_b32 v2, 6, v0")
    a.i("v_readfirstlane_b32 s3, v2")
    a.i("s_and_b32 s16, s2, 7")
    a.i("s_lshr_b32 s17, s2, 3")
    a.i("s_and_b32 s18, s17, 7")
    a.i("s_lshr_b32 s17, s17, 3")
    a.i("s_lshl_b32 s17, s17, 3")
    a.i("s_add_u32 s17, s17, s16")
    a.i("s_waitcnt lgkmcnt(0)")
    srd_finish(a, 4, 32 * 524288)
    srd_finish(a, 8, 32 * 524288)
    srd_finish(a, 12, 2048 * 8192, WS_Q)
    V_KA, V_VA, V_DK, V_DV = 4, 12, 16, 17
    V_M, V_L, V_AL, V_MC, V_T0, V_T1 = 18, 19, 20, 21, 22, 23
    V_Q, V_S, V_O, V_KF, V_VF = 32, 64, 128, 192, 224
    a.i("s_lshl_b32 s19, s18, 8")
    a.i("s_lshl_b32 s20, s3, 5")
    a.i("s_add_u32 s19, s19, s20")
    a.i("v_and_b32 v2, 31, v1")
    a.i("v_add_u32 v2, s19, v2")
    a.i("v_lshlrev_b32 v2, 13, v2")
    a.i("v_lshrrev_b32 v3, 5, v1")
    a.i("v_lshlrev_b32 v3, 4, v3")
    a.i("v_add_u32 v2, v2, v3")
    a.i("s_lshl_b32 s20, s17, 8")
    for ks in range(8):
        a.i("buffer_load_dwordx4 v[%d:%d], v2, s[12:15], s20 offen offset:%d" % (V_Q + 4 * ks, V_Q + 4 * ks + 3, 32 * ks))
    a.i("v_lshrrev_b32 v2, 4, v1")
    a.i("v_lshlrev_b32 v3, 8, v2")
    a.i("s_and_b32 s21, s3, 3")
    a.i("s_lshl_b32 s21, s21, 2")
    a.i("v_add_u32 v%d, s21, v2" % V_T0)
    a.i("v_and_b32 v%d, 15, v1" % V_T1)
    a.i("v_xor_b32 v%d, v%d, v%d" % (V_T0, V_T0, V_T1))
    a.i("v_lshlrev_b32 v%d, 4, v%d" % (V_T0, V_T0))
    a.i("v_add_u32 v%d, v3, v%d" % (V_DK, V_T0))
    a.i("v_lshlrev_b32 v%d, 2, v2" % V_T0)
    a.i("v_xor_b32 v%d, v%d, v%d" % (V_T0, V_T0, V_T1))
    a.i("v_lshlrev_b32 v%d, 4, v%d" % (V_T0, V_T0))
    a.i("v_add_u32 v%d, v3, v%d" % (V_DV, V_T0))
    a.i("v_and_b32 v2, 31, v1")
    a.i("v_lshlrev_b32 v2, 8, v2")
    a.i("v_lshrrev_b32 v3, 5, v1")
    for ks in range(8):
        a.i("v_add_u32 v%d, %d, v3" % (V_T0, 2 * ks))
        a.i("v_xor_b32 v%d, v%d, v%d" % (V_T0, V_T0, V_T1))
        a.i("v_lshlrev_b32 v%d, 4, v%d" % (V_T0, V_T0))
        a.i("v_add_u32 v%d, v2, v%d" % (V_KA + ks, V_T0))
    a.i("v_lshrrev_b32 v2, 2, v1")
    a.i("v_and_b32 v2, 3, v2")
    a.i("v_lshrrev_b32 v3, 5, v1")
    a.i("v_lshlrev_b32 v3, 2, v3")
    a.i("v_add_u32 v3, v3, v2")
    a.i("v_lshlrev_b32 v3, 8, v3")
    a.i("v_and_b32 v%d, 1, v1" % V_T0)
    a.i("v_lshlrev_b32 v%d, 3, v%d" % (V_T0, V_T0))
    a.i("v_add_u32 v3, v3, v%d" % V_T0)
    a.i("v_add_u32 v3, 32768, v3")
    a.i("v_lshrrev_b32 v%d, 4, v1" % V_T0)
    a.i("v_and_b32 v%d, 1, v%d" % (V_T0, V_T0))
    a.i("v_lshlrev_b32 v%d, 1, v%d" % (V_T0, V_T0))
    a.i("v_lshrrev_b32 v%d, 1, v1" % V_T1)
    a.i("v_and_b32 v%d, 1, v%d" % (V_T1, V_T1))
    a.i("v_add_u32 v%d, v%d, v%d" % (V_T0, V_T0, V_T1))
    a.i("v_lshlrev_b32 v2, 2, v2")
    for db in range(4):
        a.i("v_add_u32 v%d, %d, v%d" % (V_T1, 4 * db, V_T0))
        a.i("v_xor_b32 v%d, v%d, v2" % (V_T1, V_T1))
        a.i("v_lshlrev_b32 v%d, 4, v%d" % (V_T1, V_T1))
        a.i("v_add_u32 v%d, v3, v%d" % (V_VA + db, V_T1))
    for r in range(64):
        a.i("v_mov_b32 v%d, 0" % (V_O + r))
    a.i("v_mov_b32 v%d, %s" % (V_M, f32hex(-1e30)))
    a.i("v_mov_b32 v%d, 0" % V_L)
    a.i("s_mul_i32 s22, s17, 524288")
    a.i("s_lshl_b32 s23, s3, 10")
    a.i("s_add_u32 s22, s22, s23")

    def dma(buf):
        for j in range(4):
            a.i("s_add_u32 m0, s23, %d" % (buf * 65536 + j * 8192))
            a.i("s_add_u32 s24, s22, %d" % (j * 8192))
            a.i("buffer_load_dwordx4 v%d, s[4:7], s24 offen lds" % V_DK)
        for j in range(4):
            a.i("s_add_u32 m0, s23, %d" % (buf * 65536 + 32768 + j * 8192))
            a.i("s_add_u32 s24, s22, %d" % (j * 8192))
            a.i("buffer_load_dwordx4 v%d, s[8:11], s24 offen lds" % V_DV)
        a.i("s_add_u32 s22, s22, 32768")

    dma(0)
    a.i("s_cmp_lt_u32 s3, 4")
    a.i("s_cbranch_scc0 .Lprio_attn")
    a.i("s_setprio 3")
    a.label(".Lprio_attn")
    a.i("s_mov_b32 s25, 0")
    C = 128 ** -0.5 * LOG2E
    a.i("s_mov_b32 s26, %s" % f32hex(C))
    a.label(".Lloop_attn")
    a.i("s_waitcnt vmcnt(0)")
    a.i("s_barrier")
    a.i("s_cmp_ge_u32 s25, 15")
    a.i("s_cbranch_scc1 .Lnodma_attn")
    a.i("s_bitcmp1_b32 s25, 0")
    a.i("s_cbranch_scc1 .Ldma0_attn")
    dma(1)
    a.i("s_branch .Lnodma_attn")
    a.label(".Ldma0_attn")
    dma(0)
    a.label(".Lnodma_attn")

    def kread(kb, half, st):
        for j in range(4):
            ks = half * 4 + j
            b = V_KF + st * 16 + 4 * j
            a.i("ds_read_b128 v[%d:%d], v%d offset:%d" % (b, b + 3, V_KA + ks, kb * 8192))

    seq = [(kb, h) for kb in range(4) for h in range(2)]
    kread(0, 0, 0)
    for n, (kb, h) in enumerate(seq):
        if n + 1 < len(seq):
            kread(seq[n + 1][0], seq[n + 1][1], (n + 1) % 2)
            a.i("s_waitcnt lgkmcnt(4)")
        else:
            a.i("s_waitcnt lgkmcnt(0)")
        for j in range(4):
            ks = h * 4 + j
            b = V_KF + (n % 2) * 16 + 4 * j
            s = V_S + 16 * kb
            c = "0" if ks == 0 else "v[%d:%d]" % (s, s + 15)
            a.i("v_mfma_f32_32x32x16_bf16 v[%d:%d], v[%d:%d], v[%d:%d], %s" % (
                s, s + 15, b, b + 3, V_Q + 4 * ks, V_Q + 4 * ks + 3, c))
    a.i("v_max3_f32 v%d, v%d, v%d, v%d" % (V_T0, V_S, V_S + 1, V_S + 2))
    for j in range(3, 63, 2):
        a.i("v_max3_f32 v%d, v%d, v%d, v%d" % (V_T0, V_T0, V_S + j, V_S + j + 1))
    a.i("v_max_f32 v%d, v%d, v%d" % (V_T0, V_T0, V_S + 63))
    a.i("v_mov_b32 v%d, v%d" % (V_T1, V_T0))
    a.i("v_permlane32_swap_b32 v%d, v%d" % (V_T0, V_T1))
    a.i("v_max3_f32 v%d, v%d, v%d, v%d" % (V_T0, V_T0, V_T1, V_M))
    a.i("v_sub_f32 v%d, v%d, v%d" % (V_AL, V_M, V_T0))
    a.i("v_mul_f32 v%d, %s, v%d" % (V_AL, f32hex(C), V_AL))
    a.i("v_exp_f32 v%d, v%d" % (V_AL, V_AL))
    a.i("v_mov_b32 v%d, v%d" % (V_M, V_T0))
    a.i("v_mul_f32 v%d, %s, v%d" % (V_MC, f32hex(-C), V_T0))
    a.i("v_mul_f32 v%d, v%d, v%d" % (V_L, V_L, V_AL))
    for j in range(64):
        a.i("v_fma_f32 v%d, v%d, s26, v%d" % (V_S + j, V_S + j, V_MC))
        a.i("v_exp_f32 v%d, v%d" % (V_S + j, V_S + j))
    for j in range(64):
        a.i("v_add_f32 v%d, v%d, v%d" % (V_L, V_L, V_S + j))
    for r in range(64):
        a.i("v_mul_f32 v%d, v%d, v%d" % (V_O + r, V_O + r, V_AL))
    for s8 in range(8):
        b = V_S + 8 * s8
        for j in range(4):
            a.i("v_cvt_pk_bf16_f32 v%d, v%d, v%d" % (b + j, b + 2 * j, b + 2 * j + 1))

    def vread(db, half, st):
        for j in range(4):
            s8 = half * 4 + j
            b = V_VF + st * 16 + 4 * j
            a.i("ds_read_b64_tr_b16 v[%d:%d], v%d offset:%d" % (b, b + 1, V_VA + db, s8 * 4096))
            a.i("ds_read_b64_tr_b16 v[%d:%d], v%d offset:%d" % (b + 2, b + 3, V_VA + db, s8 * 4096 + 2048))

    vread(0, 0, 0)
    for n, (db, h) in enumerate(seq):
        if n + 1 < len(seq):
            vread(seq[n + 1][0], seq[n + 1][1], (n + 1) % 2)
            a.i("s_waitcnt lgkmcnt(8)")
        else:
            a.i("s_waitcnt lgkmcnt(0)")
        for j in range(4):
            s8 = h * 4 + j
            b = V_VF + (n % 2) * 16 + 4 * j
            o = V_O + 16 * db
            p = V_S + 8 * s8
            a.i("v_mfma_f32_32x32x16_bf16 v[%d:%d], v[%d:%d], v[%d:%d], v[%d:%d]" % (
                o, o + 15, b, b + 3, p, p + 3, o, o + 15))
    for j in range(8):
        a.i("v_xor_b32 v%d, 0x10000, v%d" % (V_KA + j, V_KA + j))
    for j in range(4):
        a.i("v_xor_b32 v%d, 0x10000, v%d" % (V_VA + j, V_VA + j))
    a.i("s_add_u32 s25, s25, 1")
    a.i("s_cmp_lt_u32 s25, 16")
    a.i("s_cbranch_scc1 .Lloop_attn")
    srd_from_kernarg(a, 12, KA_WS, 0)
    a.i("v_mov_b32 v%d, v%d" % (V_T1, V_L))
    a.i("v_permlane32_swap_b32 v%d, v%d" % (V_L, V_T1))
    a.i("v_add_f32 v%d, v%d, v%d" % (V_L, V_L, V_T1))
    a.i("v_rcp_f32 v%d, v%d" % (V_L, V_L))
    a.i("v_and_b32 v2, 31, v1")
    a.i("v_add_u32 v2, s19, v2")
    a.i("v_lshlrev_b32 v2, 13, v2")
    a.i("v_lshrrev_b32 v3, 5, v1")
    a.i("v_lshlrev_b32 v3, 3, v3")
    a.i("v_add_u32 v2, v2, v3")
    a.i("s_waitcnt lgkmcnt(0)")
    srd_finish(a, 12, 2048 * 8192, WS_O)
    for db in range(4):
        for g4 in range(4):
            o = V_O + 16 * db + 4 * g4
            for j in range(4):
                a.i("v_mul_f32 v%d, v%d, v%d" % (o + j, o + j, V_L))
            a.i("v_cvt_pk_bf16_f32 v%d, v%d, v%d" % (o, o, o + 1))
            a.i("v_cvt_pk_bf16_f32 v%d, v%d, v%d" % (o + 1, o + 2, o + 3))
            a.i("buffer_store_dwordx2 v[%d:%d], v2, s[12:15], s20 offen offset:%d" % (o, o + 1, (32 * db + 8 * g4) * 2))
    end(k)
    return k
```

```python
import sys
sys.path.insert(0, "gen")
from gen import *


def gemm_epilogue(a, epi, M, N, BM, BN, WM, WN, TM, TN, V_ACC, V_END, SK=1):
    T = V_END
    a.i("v_and_b32 v12, 31, v1")
    a.i("s_mul_i32 s23, s21, %d" % (BM // WM))
    a.i("s_add_u32 s23, s23, s19")
    a.i("v_add_u32 v12, s23, v12")
    a.i("v_lshrrev_b32 v13, 5, v1")
    a.i("v_lshlrev_b32 v13, 2, v13")
    a.i("s_mul_i32 s23, s22, %d" % (BN // WN))
    a.i("s_add_u32 s23, s23, s20")
    a.i("v_add_u32 v13, s23, v13")

    def out_srd(ws_off, nbytes, ka=None):
        srd_from_kernarg(a, 12, KA_WS if ka is None else ka, 0)
        a.i("s_waitcnt lgkmcnt(0)")
        srd_finish(a, 12, nbytes, ws_off if ka is None else 0)

    if epi == "q":
        ORS = N * 2
        out_srd(WS_Q, M * ORS)
        a.i("v_mul_u32_u24 v14, %d, v12" % ORS)
        a.i("v_lshlrev_b32 v15, 1, v13")
        a.i("v_add_u32 v14, v14, v15")
        a.i("v_lshrrev_b32 v15, 5, v1")
        a.i("v_lshlrev_b32 v15, 3, v15")
        a.i("v_add_u32 v14, v14, v15")
        tt = 0
        for bm in range(TM):
            a.i("s_mov_b32 s23, %d" % (bm * 32 * ORS))
            for bn in range(TN):
                for g2 in range(2):
                    acc = V_ACC + 16 * (bn * TM + bm) + 8 * g2
                    t0 = T + 4 * (tt % 3)
                    tt += 1
                    a.i("v_cvt_pk_bf16_f32 v%d, v%d, v%d" % (t0, acc, acc + 1))
                    a.i("v_cvt_pk_bf16_f32 v%d, v%d, v%d" % (t0 + 1, acc + 2, acc + 3))
                    a.i("v_cvt_pk_bf16_f32 v%d, v%d, v%d" % (t0 + 2, acc + 4, acc + 5))
                    a.i("v_cvt_pk_bf16_f32 v%d, v%d, v%d" % (t0 + 3, acc + 6, acc + 7))
                    a.i("v_permlane32_swap_b32 v%d, v%d" % (t0, t0 + 2))
                    a.i("v_permlane32_swap_b32 v%d, v%d" % (t0 + 1, t0 + 3))
                    a.i("buffer_store_dwordx4 v[%d:%d], v14, s[12:15], s23 offen offset:%d" % (
                        t0, t0 + 3, (bn * 32 + 16 * g2) * 2))
    elif epi in ("x1", "out"):
        ORS = N * 2
        gidx = 1024 if epi == "x1" else 2560
        srd_from_kernarg(a, 16, KA_WS, 0)
        if epi == "x1":
            srd_from_kernarg(a, 28, KA_X, 0)
            out_srd(WS_X1, M * ORS)
            srd_finish(a, 28, M * ORS)
        else:
            srd_from_kernarg(a, 28, KA_WS, 0)
            out_srd(0, M * ORS, KA_OUT)
            srd_finish(a, 28, M * ORS, WS_X1)
        srd_finish(a, 16, 3072 * 4, WS_MOD)
        a.i("v_mul_u32_u24 v14, %d, v12" % ORS)
        a.i("v_lshlrev_b32 v15, 1, v13")
        a.i("v_add_u32 v14, v14, v15")
        a.i("v_lshlrev_b32 v15, 2, v13")
        a.i("s_mov_b32 s24, %d" % (gidx * 4))
        for bm in range(TM):
            a.i("s_mov_b32 s23, %d" % (bm * 32 * ORS))
            for bn in range(TN):
                for g4 in range(4):
                    acc = V_ACC + 16 * (bn * TM + bm) + 4 * g4
                    o = (bn * 32 + 8 * g4)
                    a.i("buffer_load_dwordx4 v[%d:%d], v15, s[16:19], s24 offen offset:%d" % (
                        T + 4, T + 7, o * 4))
                    a.i("buffer_load_dwordx2 v[%d:%d], v14, s[28:31], s23 offen offset:%d" % (T + 8, T + 9, o * 2))
                    a.i("s_waitcnt vmcnt(0)")
                    for j in range(4):
                        bf16r(a, T + j, acc + j)
                        a.i("v_mul_f32 v%d, v%d, v%d" % (T + j, T + j, T + 4 + j))
                        bf16r(a, T + j, T + j)
                    a.i("v_lshlrev_b32 v%d, 16, v%d" % (T + 4, T + 8))
                    a.i("v_and_b32 v%d, 0xffff0000, v%d" % (T + 5, T + 8))
                    a.i("v_lshlrev_b32 v%d, 16, v%d" % (T + 6, T + 9))
                    a.i("v_and_b32 v%d, 0xffff0000, v%d" % (T + 7, T + 9))
                    for j in range(4):
                        a.i("v_add_f32 v%d, v%d, v%d" % (T + j, T + j, T + 4 + j))
                    a.i("v_cvt_pk_bf16_f32 v%d, v%d, v%d" % (T, T, T + 1))
                    a.i("v_cvt_pk_bf16_f32 v%d, v%d, v%d" % (T + 1, T + 2, T + 3))
                    a.i("buffer_store_dwordx2 v[%d:%d], v14, s[12:15], s23 offen offset:%d" % (T, T + 1, o * 2))
    elif epi == "gelu":
        ORS = N * 2
        out_srd(WS_Z, M * ORS)
        a.i("v_mul_u32_u24 v14, %d, v12" % ORS)
        a.i("v_lshlrev_b32 v15, 1, v13")
        a.i("v_add_u32 v14, v14, v15")
        c1 = f32hex(-2.0 * 0.7978845608028654 * LOG2E)
        c2 = f32hex(-2.0 * 0.7978845608028654 * 0.044715 * LOG2E)
        for bm in range(TM):
            a.i("s_mov_b32 s23, %d" % (bm * 32 * ORS))
            for bn in range(TN):
                for g4 in range(4):
                    acc = V_ACC + 16 * (bn * TM + bm) + 4 * g4
                    for j in range(4):
                        bf16r(a, T + j, acc + j)
                        a.i("v_mul_f32 v%d, v%d, v%d" % (T + 4 + j, T + j, T + j))
                        a.i("v_mul_f32 v%d, %s, v%d" % (T + 4 + j, c2, T + 4 + j))
                        a.i("v_add_f32 v%d, %s, v%d" % (T + 4 + j, c1, T + 4 + j))
                        a.i("v_mul_f32 v%d, v%d, v%d" % (T + 4 + j, T + 4 + j, T + j))
                        a.i("v_exp_f32 v%d, v%d" % (T + 4 + j, T + 4 + j))
                        a.i("v_add_f32 v%d, 1.0, v%d" % (T + 4 + j, T + 4 + j))
                        a.i("v_rcp_f32 v%d, v%d" % (T + 4 + j, T + 4 + j))
                        a.i("v_mul_f32 v%d, v%d, v%d" % (T + j, T + j, T + 4 + j))
                    a.i("v_cvt_pk_bf16_f32 v%d, v%d, v%d" % (T, T, T + 1))
                    a.i("v_cvt_pk_bf16_f32 v%d, v%d, v%d" % (T + 1, T + 2, T + 3))
                    a.i("buffer_store_dwordx2 v[%d:%d], v14, s[12:15], s23 offen offset:%d" % (
                        T, T + 1, (bn * 32 + 8 * g4) * 2))
    elif epi == "sp":
        ORS = N * 2
        ZRS = 3584
        srd_from_kernarg(a, 16, KA_BSP, 0)
        srd_from_kernarg(a, 28, KA_WS, 0)
        out_srd(WS_T, M * ORS)
        srd_finish(a, 16, 4096)
        srd_finish(a, 28, M * ZRS, WS_Z)
        a.i("v_mul_u32_u24 v14, %d, v12" % ORS)
        a.i("v_lshlrev_b32 v15, 1, v13")
        a.i("v_add_u32 v14, v14, v15")
        a.i("v_mul_u32_u24 v16, %d, v12" % ZRS)
        a.i("v_add_u32 v16, v16, v15")
        a.i("v_lshlrev_b32 v17, 1, v12")
        for bm in range(TM):
            a.i("s_mov_b32 s23, %d" % (bm * 32 * ORS))
            a.i("s_mov_b32 s24, %d" % (bm * 32 * ZRS))
            a.i("buffer_load_ushort v%d, v17, s[16:19], 0 offen offset:%d" % (T + 10, bm * 64))
            a.i("s_waitcnt vmcnt(0)")
            a.i("v_lshlrev_b32 v%d, 16, v%d" % (T + 10, T + 10))
            for bn in range(TN):
                for g4 in range(4):
                    acc = V_ACC + 16 * (bn * TM + bm) + 4 * g4
                    o = (bn * 32 + 8 * g4)
                    a.i("buffer_load_dwordx2 v[%d:%d], v16, s[28:31], s24 offen offset:%d" % (T + 8, T + 9, o * 2))
                    for j in range(4):
                        bf16r(a, T + j, acc + j)
                        a.i("v_add_f32 v%d, v%d, v%d" % (T + j, T + j, T + 10))
                        bf16r(a, T + j, T + j)
                    a.i("s_waitcnt vmcnt(0)")
                    a.i("v_lshlrev_b32 v%d, 16, v%d" % (T + 4, T + 8))
                    a.i("v_and_b32 v%d, 0xffff0000, v%d" % (T + 5, T + 8))
                    a.i("v_lshlrev_b32 v%d, 16, v%d" % (T + 6, T + 9))
                    a.i("v_and_b32 v%d, 0xffff0000, v%d" % (T + 7, T + 9))
                    for j in range(4):
                        a.i("v_mul_f32 v%d, v%d, v%d" % (T + j, T + j, T + 4 + j))
                    a.i("v_cvt_pk_bf16_f32 v%d, v%d, v%d" % (T, T, T + 1))
                    a.i("v_cvt_pk_bf16_f32 v%d, v%d, v%d" % (T + 1, T + 2, T + 3))
                    a.i("buffer_store_dwordx2 v[%d:%d], v14, s[12:15], s23 offen offset:%d" % (T, T + 1, o * 2))
```

```python
import sys
sys.path.insert(0, "gen")
from gen import *
from epi import gemm_epilogue

WS_P = 0x04000000


def gen_gemm2(name, M, N, K, BM, BN, x_src, w_src, epi, WM=2, WN=2, NS=3, SK=1):
    NW = WM * WN
    TM, TN = BM // (32 * WM), BN // (32 * WN)
    NWM, NWN = M // BM, N // BN
    NT = NWM * NWN
    NWG = NT * SK
    XRS, WRS = K * 2, N * 2
    RS = BN * 2
    XT, WT = BM * 128, 64 * RS
    STAGE = XT + WT
    LDS = NS * STAGE
    KS = K // SK
    NKT = KS // 64
    NH = (LDS + 65535) // 65536
    V_ACC = 24
    nacc = TM * TN * 16
    V_XF = V_ACC + nacc
    V_WF = V_XF + 2 * TM * 4
    V_XA = V_WF + 2 * TN * 4
    V_WA = V_XA + 4 * NH
    V_END = V_WA + TN * NH
    V_DX, V_DW = 10, 11
    nv = max(V_END, 64 + 16) + 24
    nv = (nv + 7) // 8 * 8
    k = Kern(name, (NWG, 1, 1), (64 * NW, 1, 1), LDS, nv)
    a = k.a
    begin(k)
    a.i("s_cmp_ge_u32 s2, %d" % NWG)
    a.i("s_cbranch_scc1 .Lend_" + name)
    srd_from_kernarg(a, 4, x_src[1] if x_src[0] == "ka" else KA_WS, 0)
    srd_from_kernarg(a, 8, w_src[1] if w_src[0] == "ka" else KA_WS, 0)
    a.i("v_and_b32 v1, 63, v0")
    a.i("v_lshrrev_b32 v12, 6, v0")
    a.i("v_readfirstlane_b32 s3, v12")
    if SK > 1:
        a.i("s_mul_hi_u32 s29, s2, 0x%x" % ((1 << 32) // NT + 1))
        a.i("s_mul_i32 s16, s29, %d" % NT)
        a.i("s_sub_u32 s16, s2, s16")
    else:
        a.i("s_mov_b32 s29, 0")
        a.i("s_mov_b32 s16, s2")
    a.i("s_mul_hi_u32 s17, s16, 0x%x" % ((1 << 32) // NWN + 1))
    a.i("s_mul_i32 s18, s17, %d" % NWN)
    a.i("s_sub_u32 s18, s16, s18")
    a.i("s_mul_i32 s19, s17, %d" % BM)
    a.i("s_mul_i32 s20, s18, %d" % BN)
    a.i("s_and_b32 s21, s3, %d" % (WM - 1))
    a.i("s_lshr_b32 s22, s3, %d" % (WM.bit_length() - 1))
    a.i("s_waitcnt lgkmcnt(0)")
    srd_finish(a, 4, x_src[2], 0 if x_src[0] == "ka" else x_src[1])
    srd_finish(a, 8, w_src[2], 0 if w_src[0] == "ka" else w_src[1])
    a.i("v_lshrrev_b32 v12, 3, v1")
    a.i("v_mul_u32_u24 v%d, %d, v12" % (V_DX, XRS))
    a.i("v_lshrrev_b32 v13, 4, v1")
    a.i("s_and_b32 s23, s3, 1")
    a.i("s_lshl_b32 s23, s23, 2")
    a.i("v_add_u32 v13, s23, v13")
    a.i("v_and_b32 v13, 7, v13")
    a.i("v_and_b32 v14, 7, v1")
    a.i("v_xor_b32 v14, v14, v13")
    a.i("v_lshlrev_b32 v14, 4, v14")
    a.i("v_add_u32 v%d, v%d, v14" % (V_DX, V_DX))
    if RS >= 256:
        rows_per = 1024 // RS
        assert rows_per == 4
        cpr = RS // 16
        lg = cpr.bit_length() - 1
        a.i("v_lshrrev_b32 v12, %d, v1" % lg)
        a.i("v_mul_u32_u24 v%d, %d, v12" % (V_DW, WRS))
        a.i("v_and_b32 v13, 3, v12")
        a.i("v_lshlrev_b32 v13, 2, v13")
        a.i("v_and_b32 v14, %d, v1" % (cpr - 1))
        a.i("v_xor_b32 v14, v14, v13")
        a.i("v_lshlrev_b32 v14, 4, v14")
        a.i("v_add_u32 v%d, v%d, v14" % (V_DW, V_DW))
    else:
        assert RS == 128
        rows_per = 8
        a.i("v_lshrrev_b32 v12, 3, v1")
        a.i("v_mul_u32_u24 v%d, %d, v12" % (V_DW, WRS))
        a.i("v_lshrrev_b32 v13, 1, v12")
        a.i("v_and_b32 v13, 1, v13")
        a.i("v_lshlrev_b32 v13, 2, v13")
        a.i("v_and_b32 v14, 7, v1")
        a.i("v_xor_b32 v14, v14, v13")
        a.i("v_lshlrev_b32 v14, 4, v14")
        a.i("v_add_u32 v%d, v%d, v14" % (V_DW, V_DW))
    a.i("s_lshl_b32 s23, s3, 3")
    a.i("s_add_u32 s23, s23, s19")
    a.i("s_mul_i32 s24, s23, %d" % XRS)
    a.i("s_mul_i32 s25, s3, %d" % (rows_per * WRS))
    a.i("s_lshl_b32 s23, s20, 1")
    a.i("s_add_u32 s25, s25, s23")
    if SK > 1:
        a.i("s_mul_i32 s23, s29, %d" % (KS * 2))
        a.i("s_add_u32 s24, s24, s23")
        a.i("s_mul_i32 s23, s29, %d" % (KS * WRS))
        a.i("s_add_u32 s25, s25, s23")
    nxd, nwd = BM // (8 * NW), (64 // rows_per) // NW
    assert nxd >= 1 and nwd >= 1
    D = nxd + nwd
    a.i("s_lshl_b32 s27, s3, 10")

    def dma(slot):
        for j in range(nxd):
            a.i("s_add_u32 m0, s27, %d" % (slot * STAGE + NW * j * 1024))
            a.i("s_add_u32 s26, s24, %d" % (j * 8 * NW * XRS))
            a.i("buffer_load_dwordx4 v%d, s[4:7], s26 offen lds" % V_DX)
        for j in range(nwd):
            a.i("s_add_u32 m0, s27, %d" % (slot * STAGE + XT + NW * j * 1024))
            a.i("s_add_u32 s26, s25, %d" % (j * NW * rows_per * WRS))
            a.i("buffer_load_dwordx4 v%d, s[8:11], s26 offen lds" % V_DW)
        a.i("s_add_u32 s24, s24, 128")
        a.i("s_add_u32 s25, s25, %d" % (64 * WRS))

    for s in range(min(NS - 1, NKT)):
        dma(s)
    a.i("v_and_b32 v12, 31, v1")
    a.i("s_mul_i32 s23, s21, %d" % (BM // WM))
    a.i("v_add_u32 v12, s23, v12")
    a.i("v_lshrrev_b32 v13, 1, v12")
    a.i("v_and_b32 v13, 7, v13")
    a.i("v_lshrrev_b32 v14, 5, v1")
    a.i("v_lshlrev_b32 v12, 7, v12")
    for ks in range(4):
        a.i("v_add_u32 v15, %d, v14" % (2 * ks))
        a.i("v_xor_b32 v15, v15, v13")
        a.i("v_lshlrev_b32 v15, 4, v15")
        a.i("v_add_u32 v%d, v12, v15" % (V_XA + ks))
    a.i("v_lshrrev_b32 v12, 2, v1")
    a.i("v_and_b32 v12, 3, v12")
    a.i("v_lshrrev_b32 v13, 5, v1")
    a.i("v_lshlrev_b32 v13, 3, v13")
    a.i("v_add_u32 v13, v13, v12")
    a.i("v_mul_u32_u24 v13, %d, v13" % RS)
    a.i("v_lshrrev_b32 v14, 4, v1")
    a.i("v_and_b32 v14, 1, v14")
    a.i("v_lshlrev_b32 v14, 1, v14")
    a.i("v_and_b32 v15, 3, v1")
    a.i("v_lshrrev_b32 v16, 1, v15")
    a.i("v_add_u32 v14, v14, v16")
    a.i("v_and_b32 v15, 1, v15")
    a.i("v_lshlrev_b32 v15, 3, v15")
    a.i("v_add_u32 v13, v13, v15")
    if RS >= 256:
        a.i("v_lshlrev_b32 v12, 2, v12")
    else:
        a.i("v_lshrrev_b32 v12, 1, v12")
        a.i("v_lshlrev_b32 v12, 2, v12")
    for bn in range(TN):
        a.i("s_mul_i32 s23, s22, %d" % (BN // WN // 8))
        a.i("s_add_u32 s23, s23, %d" % (4 * bn))
        a.i("v_add_u32 v15, s23, v14")
        a.i("v_xor_b32 v15, v15, v12")
        a.i("v_lshlrev_b32 v15, 4, v15")
        a.i("v_add_u32 v%d, v13, v15" % (V_WA + bn))
    for h in range(1, NH):
        for j in range(4):
            a.i("v_add_u32 v%d, 0x%x, v%d" % (V_XA + 4 * h + j, h * 65536, V_XA + j))
        for j in range(TN):
            a.i("v_add_u32 v%d, 0x%x, v%d" % (V_WA + TN * h + j, h * 65536, V_WA + j))

    def frag_reads(slot, ks, st):
        for bm in range(TM):
            off = slot * STAGE + bm * 4096
            h, lo = off >> 16, off & 65535
            a.i("ds_read_b128 v[%d:%d], v%d offset:%d" % (
                V_XF + (st * TM + bm) * 4, V_XF + (st * TM + bm) * 4 + 3, V_XA + 4 * h + ks, lo))
        for bn in range(TN):
            b = V_WF + (st * TN + bn) * 4
            for q in range(2):
                off = slot * STAGE + XT + 16 * ks * RS + q * 4 * RS
                h, lo = off >> 16, off & 65535
                a.i("ds_read_b64_tr_b16 v[%d:%d], v%d offset:%d" % (b + 2 * q, b + 2 * q + 1, V_WA + TN * h + bn, lo))

    first = [True] * (TM * TN)

    def mfmas(st):
        for bn in range(TN):
            for bm in range(TM):
                acc = V_ACC + 16 * (bn * TM + bm)
                c = "0" if first[bn * TM + bm] else "v[%d:%d]" % (acc, acc + 15)
                first[bn * TM + bm] = False
                a.i("v_mfma_f32_32x32x16_bf16 v[%d:%d], v[%d:%d], v[%d:%d], %s" % (
                    acc, acc + 15, V_WF + (st * TN + bn) * 4, V_WF + (st * TN + bn) * 4 + 3,
                    V_XF + (st * TM + bm) * 4, V_XF + (st * TM + bm) * 4 + 3, c))

    nrd = TM + 2 * TN
    for kt in range(NKT):
        slot = kt % NS
        issued_last = min(kt + NS - 2, NKT - 1)
        a.i("s_waitcnt vmcnt(%d)" % ((issued_last - kt) * D))
        a.i("s_barrier")
        if kt + NS - 1 < NKT:
            dma((kt + NS - 1) % NS)
        frag_reads(slot, 0, 0)
        for ks in range(4):
            if ks < 3:
                frag_reads(slot, ks + 1, (ks + 1) % 2)
                a.i("s_waitcnt lgkmcnt(%d)" % nrd)
            else:
                a.i("s_waitcnt lgkmcnt(0)")
            mfmas(ks % 2)
    if epi == "part":
        T = V_END
        ORS = N * 4
        a.i("v_and_b32 v12, 31, v1")
        a.i("s_mul_i32 s23, s21, %d" % (BM // WM))
        a.i("s_add_u32 s23, s23, s19")
        a.i("v_add_u32 v12, s23, v12")
        a.i("v_lshrrev_b32 v13, 5, v1")
        a.i("v_lshlrev_b32 v13, 2, v13")
        a.i("s_mul_i32 s23, s22, %d" % (BN // WN))
        a.i("s_add_u32 s23, s23, s20")
        a.i("v_add_u32 v13, s23, v13")
        srd_from_kernarg(a, 12, KA_WS, 0)
        a.i("s_waitcnt lgkmcnt(0)")
        srd_finish(a, 12, SK * M * ORS, WS_P)
        a.i("v_mul_u32_u24 v14, %d, v12" % ORS)
        a.i("v_lshlrev_b32 v15, 2, v13")
        a.i("v_add_u32 v14, v14, v15")
        a.i("s_mul_i32 s24, s29, %d" % (M * ORS))
        for bm in range(TM):
            a.i("s_add_u32 s23, s24, %d" % (bm * 32 * ORS))
            for bn in range(TN):
                for g4 in range(4):
                    acc = V_ACC + 16 * (bn * TM + bm) + 4 * g4
                    a.i("buffer_store_dwordx4 v[%d:%d], v14, s[12:15], s23 offen offset:%d" % (
                        acc, acc + 3, (bn * 32 + 8 * g4) * 4))
    else:
        gemm_epilogue(a, epi, M, N, BM, BN, WM, WN, TM, TN, V_ACC, V_END)
    end(k)
    return k
```

```python
import sys

sys.path.insert(0, "gen")
from asmlib import Asm

OUT = "adaLN_cond__mha_block_cached__mixer_gmlp__prompt.s"

WS_MOD = 0
WS_H = 0x00100000
WS_Q = 0x00400000
WS_O = 0x01400000
WS_X1 = 0x02400000
WS_H2 = 0x02600000
WS_Z = 0x02800000
WS_Z2N = 0x03000000
WS_T = 0x03400000

KA_X, KA_K, KA_V, KA_WQ, KA_WO, KA_WIN, KA_WSP, KA_BSP, KA_WOUT, KA_C, KA_WMOD, KA_OUT, KA_WS = (
    0, 8, 16, 24, 32, 48, 56, 64, 72, 80, 88, 96, 112)

LOG2E = 1.4426950408889634


def f32hex(x):
    import struct
    return "0x%08x" % struct.unpack("<I", struct.pack("<f", x))[0]


class Kern:
    def __init__(self, name, grid, block, lds, vgpr, sgpr=102):
        self.name, self.grid, self.block, self.lds, self.vgpr, self.sgpr = name, grid, block, lds, vgpr, sgpr
        self.a = Asm()


def begin(k):
    a = k.a
    a.raw(".globl %s" % k.name)
    a.raw(".p2align 8")
    a.raw(".type %s,@function" % k.name)
    a.raw(k.name + ":")


def end(k):
    a = k.a
    a.label(".Lend_" + k.name)
    a.i("s_endpgm")


def srd_from_kernarg(a, sreg, karg_off, nbytes):
    a.i("s_load_dwordx2 s[%d:%d], s[0:1], %d" % (sreg, sreg + 1, karg_off))


def srd_finish(a, sreg, nbytes, add_off=0):
    if add_off:
        a.i("s_add_u32 s%d, s%d, 0x%x" % (sreg, sreg, add_off))
        a.i("s_addc_u32 s%d, s%d, 0" % (sreg + 1, sreg + 1))
    a.i("s_and_b32 s%d, s%d, 0xffff" % (sreg + 1, sreg + 1))
    a.i("s_mov_b32 s%d, 0x%x" % (sreg + 2, nbytes))
    a.i("s_mov_b32 s%d, 0x00020000" % (sreg + 3))


def bf16r(a, vd, vs):
    a.i("v_cvt_pk_bf16_f32 v%d, v%d, v%d" % (vd, vs, vs))
    a.i("v_lshlrev_b32 v%d, 16, v%d" % (vd, vd))


def wave_sum_to_sgpr(a, v, s):
    for m in ("quad_perm:[1,0,3,2]", "quad_perm:[2,3,0,1]", "row_half_mirror", "row_mirror"):
        a.i("v_add_f32_dpp v%d, v%d, v%d %s row_mask:0xf bank_mask:0xf" % (v, v, v, m))
    a.i("v_add_f32_dpp v%d, v%d, v%d row_bcast:15 row_mask:0xa bank_mask:0xf" % (v, v, v))
    a.i("v_add_f32_dpp v%d, v%d, v%d row_bcast:31 row_mask:0xc bank_mask:0xf" % (v, v, v))
    a.i("v_readlane_b32 s%d, v%d, 63" % (s, v))


def gen_mod():
    k = Kern("mod_kernel", (24, 1, 1), (256, 1, 1), 4096, 168)
    a = k.a
    begin(k)
    a.i("s_cmp_ge_u32 s2, 24")
    a.i("s_cbranch_scc1 .Lend_mod_kernel")
    srd_from_kernarg(a, 4, KA_C, 0)
    srd_from_kernarg(a, 8, KA_WMOD, 0)
    srd_from_kernarg(a, 12, KA_WS, 0)
    a.i("v_and_b32 v1, 63, v0")
    a.i("v_lshrrev_b32 v2, 6, v0")
    a.i("v_readfirstlane_b32 s3, v2")
    a.i("s_waitcnt lgkmcnt(0)")
    srd_finish(a, 4, 1024)
    srd_finish(a, 8, 512 * 6144)
    srd_finish(a, 12, 3072 * 4, WS_MOD)
    a.i("s_lshl_b32 s16, s3, 8")
    a.i("v_lshlrev_b32 v3, 1, v1")
    a.i("buffer_load_ushort v4, v3, s[4:7], s16 offen")
    a.i("buffer_load_ushort v5, v3, s[4:7], s16 offen offset:128")
    a.i("s_lshl_b32 s17, s2, 8")
    a.i("v_lshlrev_b32 v6, 2, v1")
    a.i("v_add_u32 v6, s17, v6")
    a.i("s_mul_i32 s18, s3, %d" % (128 * 6144))
    for kk in range(128):
        a.i("buffer_load_dword v%d, v6, s[8:11], s18 offen" % (32 + kk))
        a.i("s_add_u32 s18, s18, 6144")
    a.i("s_waitcnt vmcnt(0)")
    for v in (4, 5):
        a.i("v_lshlrev_b32 v%d, 16, v%d" % (v, v))
        a.i("v_mul_f32 v7, %s, v%d" % (f32hex(-LOG2E), v))
        a.i("v_exp_f32 v7, v7")
        a.i("v_add_f32 v7, 1.0, v7")
        a.i("v_rcp_f32 v7, v7")
        a.i("v_mul_f32 v%d, v%d, v7" % (v, v))
        bf16r(a, v, v)
    a.i("v_mov_b32 v8, 0")
    a.i("v_mov_b32 v9, 0")
    for g in range(8):
        for j in range(16):
            kk = g * 16 + j
            a.i("v_readlane_b32 s%d, v%d, %d" % (20 + j, 4 + kk // 64, kk % 64))
        for j in range(16):
            kk = g * 16 + j
            a.i("v_lshlrev_b32 v10, 16, v%d" % (32 + kk))
            a.i("v_and_b32 v11, 0xffff0000, v%d" % (32 + kk))
            a.i("v_fmac_f32 v8, s%d, v10" % (20 + j))
            a.i("v_fmac_f32 v9, s%d, v11" % (20 + j))
    a.i("v_lshlrev_b32 v12, 3, v0")
    a.i("ds_write_b64 v12, v[8:9]")
    a.i("s_waitcnt lgkmcnt(0)")
    a.i("s_barrier")
    a.i("s_cmp_lg_u32 s3, 0")
    a.i("s_cbranch_scc1 .Lend_mod_kernel")
    a.i("ds_read_b64 v[14:15], v12 offset:512")
    a.i("ds_read_b64 v[16:17], v12 offset:1024")
    a.i("ds_read_b64 v[18:19], v12 offset:1536")
    a.i("s_waitcnt lgkmcnt(0)")
    a.i("v_add_f32 v8, v8, v14")
    a.i("v_add_f32 v9, v9, v15")
    a.i("v_add_f32 v16, v16, v18")
    a.i("v_add_f32 v17, v17, v19")
    a.i("v_add_f32 v8, v8, v16")
    a.i("v_add_f32 v9, v9, v17")
    bf16r(a, 8, 8)
    bf16r(a, 9, 9)
    a.i("v_lshlrev_b32 v6, 1, v6")
    a.i("buffer_store_dwordx2 v[8:9], v6, s[12:15], 0 offen")
    end(k)
    return k


def ln_finish_stats(a, s_sum, s_ss_unused=None):
    pass


def gen_ln512(name, src_karg, src_ws, dst_ws, scale_idx, shift_idx):
    k = Kern(name, (512, 1, 1), (256, 1, 1), 0, 64)
    a = k.a
    begin(k)
    a.i("s_cmp_ge_u32 s2, 512")
    a.i("s_cbranch_scc1 .Lend_" + name)
    if src_karg is not None:
        srd_from_kernarg(a, 4, src_karg, 0)
    else:
        srd_from_kernarg(a, 4, KA_WS, 0)
    srd_from_kernarg(a, 8, KA_WS, 0)
    srd_from_kernarg(a, 12, KA_WS, 0)
    a.i("v_and_b32 v1, 63, v0")
    a.i("v_lshrrev_b32 v2, 6, v0")
    a.i("v_readfirstlane_b32 s3, v2")
    a.i("s_waitcnt lgkmcnt(0)")
    srd_finish(a, 4, 2048 * 1024, 0 if src_karg is not None else src_ws)
    srd_finish(a, 8, 2048 * 1024, dst_ws)
    srd_finish(a, 12, 3072 * 4, WS_MOD)
    a.i("s_lshl_b32 s16, s2, 2")
    a.i("s_add_u32 s16, s16, s3")
    a.i("s_lshl_b32 s16, s16, 10")
    a.i("v_lshlrev_b32 v3, 4, v1")
    a.i("buffer_load_dwordx4 v[4:7], v3, s[4:7], s16 offen")
    a.i("v_lshlrev_b32 v8, 5, v1")
    a.i("s_mov_b32 s17, %d" % (scale_idx * 4))
    a.i("s_mov_b32 s18, %d" % (shift_idx * 4))
    a.i("buffer_load_dwordx4 v[40:43], v8, s[12:15], s17 offen")
    a.i("buffer_load_dwordx4 v[44:47], v8, s[12:15], s17 offen offset:16")
    a.i("buffer_load_dwordx4 v[48:51], v8, s[12:15], s18 offen")
    a.i("buffer_load_dwordx4 v[52:55], v8, s[12:15], s18 offen offset:16")
    a.i("s_waitcnt vmcnt(4)")
    for j in range(4):
        a.i("v_lshlrev_b32 v%d, 16, v%d" % (16 + 2 * j, 4 + j))
        a.i("v_and_b32 v%d, 0xffff0000, v%d" % (17 + 2 * j, 4 + j))
    ln_core(a, 8, 16, 512)
    a.i("s_waitcnt vmcnt(0)")
    for j in range(8):
        a.i("v_add_f32 v%d, 1.0, v%d" % (40 + j, 40 + j))
        bf16r(a, 40 + j, 40 + j)
    for j in range(8):
        a.i("v_mul_f32 v%d, v%d, v%d" % (16 + j, 16 + j, 40 + j))
        bf16r(a, 16 + j, 16 + j)
        a.i("v_add_f32 v%d, v%d, v%d" % (16 + j, 16 + j, 48 + j))
    for j in range(4):
        a.i("v_cvt_pk_bf16_f32 v%d, v%d, v%d" % (4 + j, 16 + 2 * j, 17 + 2 * j))
    a.i("buffer_store_dwordx4 v[4:7], v3, s[8:11], s16 offen")
    end(k)
    return k


def ln_core(a, n, vx, ncols):
    a.i("v_add_f32 v30, v%d, v%d" % (vx, vx + 1))
    for j in range(2, n):
        a.i("v_add_f32 v30, v30, v%d" % (vx + j))
    wave_sum_to_sgpr(a, 30, 20)
    a.i("v_mov_b32 v31, s20")
    a.i("v_mul_f32 v31, %s, v31" % f32hex(1.0 / ncols))
    a.i("v_sub_f32 v32, v%d, v31" % vx)
    a.i("v_mul_f32 v30, v32, v32")
    for j in range(1, n):
        a.i("v_sub_f32 v32, v%d, v31" % (vx + j))
        a.i("v_fmac_f32 v30, v32, v32")
    wave_sum_to_sgpr(a, 30, 21)
    a.i("v_mov_b32 v32, s21")
    a.i("v_mul_f32 v32, %s, v32" % f32hex(1.0 / ncols))
    bf16r(a, 31, 31)
    bf16r(a, 32, 32)
    a.i("v_add_f32 v32, %s, v32" % f32hex(1e-5))
    bf16r(a, 32, 32)
    a.i("v_sqrt_f32 v32, v32")
    bf16r(a, 32, 32)
    a.i("v_rcp_f32 v32, v32")
    for j in range(n):
        a.i("v_sub_f32 v%d, v%d, v31" % (vx + j, vx + j))
        bf16r(a, vx + j, vx + j)
        a.i("v_mul_f32 v%d, v%d, v32" % (vx + j, vx + j))
        bf16r(a, vx + j, vx + j)


def gen_ln896():
    name = "ln3_kernel"
    k = Kern(name, (512, 1, 1), (256, 1, 1), 0, 64)
    a = k.a
    begin(k)
    a.i("s_cmp_ge_u32 s2, 512")
    a.i("s_cbranch_scc1 .Lend_" + name)
    srd_from_kernarg(a, 4, KA_WS, 0)
    srd_from_kernarg(a, 8, KA_WS, 0)
    a.i("v_and_b32 v1, 63, v0")
    a.i("v_lshrrev_b32 v2, 6, v0")
    a.i("v_readfirstlane_b32 s3, v2")
    a.i("s_waitcnt lgkmcnt(0)")
    srd_finish(a, 4, 2048 * 3584, WS_Z)
    srd_finish(a, 8, 2048 * 1792, WS_Z2N)
    a.i("s_lshl_b32 s16, s2, 2")
    a.i("s_add_u32 s16, s16, s3")
    a.i("s_mul_i32 s17, s16, 3584")
    a.i("s_add_u32 s17, s17, 1792")
    a.i("s_mul_i32 s18, s16, 1792")
    a.i("v_mul_u32_u24 v3, 28, v1")
    a.i("buffer_load_dwordx4 v[4:7], v3, s[4:7], s17 offen")
    a.i("buffer_load_dwordx3 v[8:10], v3, s[4:7], s17 offen offset:16")
    a.i("s_waitcnt vmcnt(0)")
    for j in range(7):
        a.i("v_lshlrev_b32 v%d, 16, v%d" % (40 + 2 * j, 4 + j))
        a.i("v_and_b32 v%d, 0xffff0000, v%d" % (41 + 2 * j, 4 + j))
    ln_core(a, 14, 40, 896)
    for j in range(7):
        a.i("v_cvt_pk_bf16_f32 v%d, v%d, v%d" % (4 + j, 40 + 2 * j, 41 + 2 * j))
    a.i("buffer_store_dwordx4 v[4:7], v3, s[8:11], s18 offen")
    a.i("buffer_store_dwordx3 v[8:10], v3, s[8:11], s18 offen offset:16")
    end(k)
    return k


def gen_gemm(name, M, N, K, BM, BN, x_src, w_src, epi):
    TM, TN = BM // 64, BN // 64
    NWM, NWN = M // BM, N // BN
    NWG = NWM * NWN
    XRS, WRS = K * 2, N * 2
    RS = BN * 2
    XT, WT = BM * 128, 64 * RS
    STAGE = XT + WT
    LDS = 2 * STAGE
    NKT = K // 64
    assert NKT % 2 == 0
    V_ACC = 24
    nacc = TM * TN * 16
    V_XF = V_ACC + nacc
    V_WF = V_XF + 2 * TM * 4
    V_END = V_WF + 2 * TN * 4
    V_XA = 2
    V_WA = 6
    V_DX, V_DW = 10, 11
    nv = max(V_END, 64 + 16) + 24
    nv = (nv + 7) // 8 * 8
    k = Kern(name, (NWG, 1, 1), (256, 1, 1), LDS, nv)
    a = k.a
    begin(k)
    a.i("s_cmp_ge_u32 s2, %d" % NWG)
    a.i("s_cbranch_scc1 .Lend_" + name)
    srd_from_kernarg(a, 4, x_src[1] if x_src[0] == "ka" else KA_WS, 0)
    srd_from_kernarg(a, 8, w_src[1] if w_src[0] == "ka" else KA_WS, 0)
    a.i("v_and_b32 v1, 63, v0")
    a.i("v_lshrrev_b32 v12, 6, v0")
    a.i("v_readfirstlane_b32 s3, v12")
    a.i("s_mov_b32 s16, s2")
    a.i("s_mul_hi_u32 s17, s16, 0x%x" % ((1 << 32) // NWN + 1))
    a.i("s_mul_i32 s18, s17, %d" % NWN)
    a.i("s_sub_u32 s18, s16, s18")
    a.i("s_mul_i32 s19, s17, %d" % BM)
    a.i("s_mul_i32 s20, s18, %d" % BN)
    a.i("s_and_b32 s21, s3, 1")
    a.i("s_lshr_b32 s22, s3, 1")
    a.i("s_waitcnt lgkmcnt(0)")
    srd_finish(a, 4, x_src[2], 0 if x_src[0] == "ka" else x_src[1])
    srd_finish(a, 8, w_src[2], 0 if w_src[0] == "ka" else w_src[1])
    a.i("v_lshrrev_b32 v12, 3, v1")
    a.i("v_mul_u32_u24 v%d, %d, v12" % (V_DX, XRS))
    a.i("v_lshrrev_b32 v13, 4, v1")
    a.i("s_lshl_b32 s23, s21, 2")
    a.i("v_add_u32 v13, s23, v13")
    a.i("v_and_b32 v13, 7, v13")
    a.i("v_and_b32 v14, 7, v1")
    a.i("v_xor_b32 v14, v14, v13")
    a.i("v_lshlrev_b32 v14, 4, v14")
    a.i("v_add_u32 v%d, v%d, v14" % (V_DX, V_DX))
    if RS >= 256:
        rows_per = 1024 // RS
        cpr = RS // 16
        lg = cpr.bit_length() - 1
        a.i("v_lshrrev_b32 v12, %d, v1" % lg)
        a.i("v_mul_u32_u24 v%d, %d, v12" % (V_DW, WRS))
        a.i("v_and_b32 v13, 3, v12")
        a.i("v_lshlrev_b32 v13, 2, v13")
        assert rows_per == 4 or rows_per == 2
        a.i("v_and_b32 v14, %d, v1" % (cpr - 1))
        a.i("v_xor_b32 v14, v14, v13")
        a.i("v_lshlrev_b32 v14, 4, v14")
        a.i("v_add_u32 v%d, v%d, v14" % (V_DW, V_DW))
        assert rows_per == 4, "RS=512 needs per-instr parity handling"
    else:
        assert RS == 128
        rows_per = 8
        a.i("v_lshrrev_b32 v12, 3, v1")
        a.i("v_mul_u32_u24 v%d, %d, v12" % (V_DW, WRS))
        a.i("v_lshrrev_b32 v13, 1, v12")
        a.i("v_and_b32 v13, 1, v13")
        a.i("v_lshlrev_b32 v13, 2, v13")
        a.i("v_and_b32 v14, 7, v1")
        a.i("v_xor_b32 v14, v14, v13")
        a.i("v_lshlrev_b32 v14, 4, v14")
        a.i("v_add_u32 v%d, v%d, v14" % (V_DW, V_DW))
    a.i("v_and_b32 v12, 31, v1")
    a.i("s_mul_i32 s23, s21, %d" % (BM // 2))
    a.i("v_add_u32 v12, s23, v12")
    a.i("v_lshrrev_b32 v13, 1, v12")
    a.i("v_and_b32 v13, 7, v13")
    a.i("v_lshrrev_b32 v14, 5, v1")
    a.i("v_lshlrev_b32 v12, 7, v12")
    for ks in range(4):
        a.i("v_add_u32 v15, %d, v14" % (2 * ks))
        a.i("v_xor_b32 v15, v15, v13")
        a.i("v_lshlrev_b32 v15, 4, v15")
        a.i("v_add_u32 v%d, v12, v15" % (V_XA + ks))
    a.i("v_lshrrev_b32 v12, 2, v1")
    a.i("v_and_b32 v12, 3, v12")
    a.i("v_lshrrev_b32 v13, 5, v1")
    a.i("v_lshlrev_b32 v13, 3, v13")
    a.i("v_add_u32 v13, v13, v12")
    a.i("v_mul_u32_u24 v13, %d, v13" % RS)
    a.i("v_lshrrev_b32 v14, 4, v1")
    a.i("v_and_b32 v14, 1, v14")
    a.i("v_lshlrev_b32 v14, 1, v14")
    a.i("v_and_b32 v15, 3, v1")
    a.i("v_lshrrev_b32 v16, 1, v15")
    a.i("v_add_u32 v14, v14, v16")
    a.i("v_and_b32 v15, 1, v15")
    a.i("v_lshlrev_b32 v15, 3, v15")
    a.i("v_add_u32 v13, v13, v15")
    if RS >= 256:
        a.i("v_lshlrev_b32 v12, 2, v12")
    else:
        a.i("v_lshrrev_b32 v12, 1, v12")
        a.i("v_lshlrev_b32 v12, 2, v12")
    for bn in range(TN):
        a.i("s_mul_i32 s23, s22, %d" % (BN // 16))
        a.i("s_add_u32 s23, s23, %d" % (4 * bn))
        a.i("v_add_u32 v15, s23, v14")
        a.i("v_xor_b32 v15, v15, v12")
        a.i("v_lshlrev_b32 v15, 4, v15")
        a.i("v_add_u32 v%d, v13, v15" % (V_WA + bn))
    for r in range(nacc):
        a.i("v_mov_b32 v%d, 0" % (V_ACC + r))
    a.i("s_lshl_b32 s23, s3, 3")
    a.i("s_add_u32 s23, s23, s19")
    a.i("s_mul_i32 s24, s23, %d" % XRS)
    a.i("s_mul_i32 s25, s3, %d" % (rows_per * WRS))
    a.i("s_lshl_b32 s23, s20, 1")
    a.i("s_add_u32 s25, s25, s23")
    nxd, nwd = BM // 32, (64 // rows_per) // 4

    def dma(buf):
        for j in range(nxd):
            a.i("s_add_u32 m0, s27, %d" % (buf * STAGE + (4 * j) * 1024))
            a.i("s_add_u32 s26, s24, %d" % (j * 32 * XRS))
            a.i("buffer_load_dwordx4 v%d, s[4:7], s26 offen lds" % V_DX)
        for j in range(nwd):
            a.i("s_add_u32 m0, s27, %d" % (buf * STAGE + XT + (4 * j) * 1024))
            a.i("s_add_u32 s26, s25, %d" % (j * 4 * rows_per * WRS))
            a.i("buffer_load_dwordx4 v%d, s[8:11], s26 offen lds" % V_DW)
        a.i("s_add_u32 s24, s24, 128")
        a.i("s_add_u32 s25, s25, %d" % (64 * WRS))

    a.i("s_lshl_b32 s27, s3, 10")
    dma(0)
    a.i("s_mov_b32 s28, 0")

    def frag_reads(buf, ks, st):
        for bm in range(TM):
            a.i("ds_read_b128 v[%d:%d], v%d offset:%d" % (
                V_XF + (st * TM + bm) * 4, V_XF + (st * TM + bm) * 4 + 3, V_XA + ks, buf * STAGE + bm * 4096))
        for bn in range(TN):
            b = V_WF + (st * TN + bn) * 4
            off = buf * STAGE + XT + 16 * ks * RS
            a.i("ds_read_b64_tr_b16 v[%d:%d], v%d offset:%d" % (b, b + 1, V_WA + bn, off))
            a.i("ds_read_b64_tr_b16 v[%d:%d], v%d offset:%d" % (b + 2, b + 3, V_WA + bn, off + 4 * RS))

    def mfmas(st):
        for bn in range(TN):
            for bm in range(TM):
                acc = V_ACC + 16 * (bn * TM + bm)
                a.i("v_mfma_f32_32x32x16_bf16 v[%d:%d], v[%d:%d], v[%d:%d], v[%d:%d]" % (
                    acc, acc + 15, V_WF + (st * TN + bn) * 4, V_WF + (st * TN + bn) * 4 + 3,
                    V_XF + (st * TM + bm) * 4, V_XF + (st * TM + bm) * 4 + 3, acc, acc + 15))

    nrd = TM + 2 * TN
    a.label(".Lloop_" + name)
    for buf in range(2):
        a.i("s_waitcnt vmcnt(0)")
        a.i("s_barrier")
        if buf == 1:
            a.i("s_cmp_ge_u32 s28, %d" % (NKT - 2))
            a.i("s_cbranch_scc1 .Lnodma_" + name)
        dma(1 - buf)
        if buf == 1:
            a.label(".Lnodma_" + name)
        frag_reads(buf, 0, 0)
        for ks in range(4):
            if ks < 3:
                frag_reads(buf, ks + 1, (ks + 1) % 2)
                a.i("s_waitcnt lgkmcnt(%d)" % nrd)
            else:
                a.i("s_waitcnt lgkmcnt(0)")
            mfmas(ks % 2)
    a.i("s_add_u32 s28, s28, 2")
    a.i("s_cmp_lt_u32 s28, %d" % NKT)
    a.i("s_cbranch_scc1 .Lloop_" + name)

    T = V_END
    a.i("v_and_b32 v12, 31, v1")
    a.i("s_mul_i32 s23, s21, %d" % (BM // 2))
    a.i("s_add_u32 s23, s23, s19")
    a.i("v_add_u32 v12, s23, v12")
    a.i("v_lshrrev_b32 v13, 5, v1")
    a.i("v_lshlrev_b32 v13, 2, v13")
    a.i("s_mul_i32 s23, s22, %d" % (BN // 2))
    a.i("s_add_u32 s23, s23, s20")
    a.i("v_add_u32 v13, s23, v13")

    def out_srd(ws_off, nbytes, ka=None):
        srd_from_kernarg(a, 12, KA_WS if ka is None else ka, 0)
        a.i("s_waitcnt lgkmcnt(0)")
        srd_finish(a, 12, nbytes, ws_off if ka is None else 0)

    if epi == "q":
        ORS = N * 2
        out_srd(WS_Q, M * ORS)
        a.i("v_mul_u32_u24 v14, %d, v12" % ORS)
        a.i("v_lshlrev_b32 v15, 1, v13")
        a.i("v_add_u32 v14, v14, v15")
        for bm in range(TM):
            a.i("s_mov_b32 s23, %d" % (bm * 32 * ORS))
            for bn in range(TN):
                for g4 in range(4):
                    acc = V_ACC + 16 * (bn * TM + bm) + 4 * g4
                    a.i("v_cvt_pk_bf16_f32 v%d, v%d, v%d" % (T, acc, acc + 1))
                    a.i("v_cvt_pk_bf16_f32 v%d, v%d, v%d" % (T + 1, acc + 2, acc + 3))
                    a.i("buffer_store_dwordx2 v[%d:%d], v14, s[12:15], s23 offen offset:%d" % (
                        T, T + 1, (bn * 32 + 8 * g4) * 2))
    elif epi in ("x1", "out"):
        ORS = N * 2
        gidx = 1024 if epi == "x1" else 2560
        srd_from_kernarg(a, 16, KA_WS, 0)
        if epi == "x1":
            srd_from_kernarg(a, 28, KA_X, 0)
            out_srd(WS_X1, M * ORS)
            srd_finish(a, 28, M * ORS)
        else:
            srd_from_kernarg(a, 28, KA_WS, 0)
            out_srd(0, M * ORS, KA_OUT)
            srd_finish(a, 28, M * ORS, WS_X1)
        srd_finish(a, 16, 3072 * 4, WS_MOD)
        a.i("v_mul_u32_u24 v14, %d, v12" % ORS)
        a.i("v_lshlrev_b32 v15, 1, v13")
        a.i("v_add_u32 v14, v14, v15")
        a.i("v_lshlrev_b32 v15, 2, v13")
        a.i("s_mov_b32 s24, %d" % (gidx * 4))
        for bm in range(TM):
            a.i("s_mov_b32 s23, %d" % (bm * 32 * ORS))
            for bn in range(TN):
                for g4 in range(4):
                    acc = V_ACC + 16 * (bn * TM + bm) + 4 * g4
                    o = (bn * 32 + 8 * g4)
                    a.i("buffer_load_dwordx4 v[%d:%d], v15, s[16:19], s24 offen offset:%d" % (
                        T + 4, T + 7, o * 4))
                    a.i("buffer_load_dwordx2 v[%d:%d], v14, s[28:31], s23 offen offset:%d" % (T + 8, T + 9, o * 2))
                    a.i("s_waitcnt vmcnt(0)")
                    for j in range(4):
                        bf16r(a, T + j, acc + j)
                        a.i("v_mul_f32 v%d, v%d, v%d" % (T + j, T + j, T + 4 + j))
                        bf16r(a, T + j, T + j)
                    a.i("v_lshlrev_b32 v%d, 16, v%d" % (T + 4, T + 8))
                    a.i("v_and_b32 v%d, 0xffff0000, v%d" % (T + 5, T + 8))
                    a.i("v_lshlrev_b32 v%d, 16, v%d" % (T + 6, T + 9))
                    a.i("v_and_b32 v%d, 0xffff0000, v%d" % (T + 7, T + 9))
                    for j in range(4):
                        a.i("v_add_f32 v%d, v%d, v%d" % (T + j, T + j, T + 4 + j))
                    a.i("v_cvt_pk_bf16_f32 v%d, v%d, v%d" % (T, T, T + 1))
                    a.i("v_cvt_pk_bf16_f32 v%d, v%d, v%d" % (T + 1, T + 2, T + 3))
                    a.i("buffer_store_dwordx2 v[%d:%d], v14, s[12:15], s23 offen offset:%d" % (T, T + 1, o * 2))
    elif epi == "gelu":
        ORS = N * 2
        out_srd(WS_Z, M * ORS)
        a.i("v_mul_u32_u24 v14, %d, v12" % ORS)
        a.i("v_lshlrev_b32 v15, 1, v13")
        a.i("v_add_u32 v14, v14, v15")
        c1 = f32hex(-2.0 * 0.7978845608028654 * LOG2E)
        c2 = f32hex(-2.0 * 0.7978845608028654 * 0.044715 * LOG2E)
        for bm in range(TM):
            a.i("s_mov_b32 s23, %d" % (bm * 32 * ORS))
            for bn in range(TN):
                for g4 in range(4):
                    acc = V_ACC + 16 * (bn * TM + bm) + 4 * g4
                    for j in range(4):
                        bf16r(a, T + j, acc + j)
                        a.i("v_mul_f32 v%d, v%d, v%d" % (T + 4 + j, T + j, T + j))
                        a.i("v_mul_f32 v%d, %s, v%d" % (T + 4 + j, c2, T + 4 + j))
                        a.i("v_add_f32 v%d, %s, v%d" % (T + 4 + j, c1, T + 4 + j))
                        a.i("v_mul_f32 v%d, v%d, v%d" % (T + 4 + j, T + 4 + j, T + j))
                        a.i("v_exp_f32 v%d, v%d" % (T + 4 + j, T + 4 + j))
                        a.i("v_add_f32 v%d, 1.0, v%d" % (T + 4 + j, T + 4 + j))
                        a.i("v_rcp_f32 v%d, v%d" % (T + 4 + j, T + 4 + j))
                        a.i("v_mul_f32 v%d, v%d, v%d" % (T + j, T + j, T + 4 + j))
                    a.i("v_cvt_pk_bf16_f32 v%d, v%d, v%d" % (T, T, T + 1))
                    a.i("v_cvt_pk_bf16_f32 v%d, v%d, v%d" % (T + 1, T + 2, T + 3))
                    a.i("buffer_store_dwordx2 v[%d:%d], v14, s[12:15], s23 offen offset:%d" % (
                        T, T + 1, (bn * 32 + 8 * g4) * 2))
    elif epi == "sp":
        ORS = N * 2
        ZRS = 3584
        srd_from_kernarg(a, 16, KA_BSP, 0)
        srd_from_kernarg(a, 28, KA_WS, 0)
        out_srd(WS_T, M * ORS)
        srd_finish(a, 16, 4096)
        srd_finish(a, 28, M * ZRS, WS_Z)
        a.i("v_mul_u32_u24 v14, %d, v12" % ORS)
        a.i("v_lshlrev_b32 v15, 1, v13")
        a.i("v_add_u32 v14, v14, v15")
        a.i("v_mul_u32_u24 v16, %d, v12" % ZRS)
        a.i("v_add_u32 v16, v16, v15")
        a.i("v_lshlrev_b32 v17, 1, v12")
        for bm in range(TM):
            a.i("s_mov_b32 s23, %d" % (bm * 32 * ORS))
            a.i("s_mov_b32 s24, %d" % (bm * 32 * ZRS))
            a.i("buffer_load_ushort v%d, v17, s[16:19], 0 offen offset:%d" % (T + 10, bm * 64))
            a.i("s_waitcnt vmcnt(0)")
            a.i("v_lshlrev_b32 v%d, 16, v%d" % (T + 10, T + 10))
            for bn in range(TN):
                for g4 in range(4):
                    acc = V_ACC + 16 * (bn * TM + bm) + 4 * g4
                    o = (bn * 32 + 8 * g4)
                    a.i("buffer_load_dwordx2 v[%d:%d], v16, s[28:31], s24 offen offset:%d" % (T + 8, T + 9, o * 2))
                    for j in range(4):
                        bf16r(a, T + j, acc + j)
                        a.i("v_add_f32 v%d, v%d, v%d" % (T + j, T + j, T + 10))
                        bf16r(a, T + j, T + j)
                    a.i("s_waitcnt vmcnt(0)")
                    a.i("v_lshlrev_b32 v%d, 16, v%d" % (T + 4, T + 8))
                    a.i("v_and_b32 v%d, 0xffff0000, v%d" % (T + 5, T + 8))
                    a.i("v_lshlrev_b32 v%d, 16, v%d" % (T + 6, T + 9))
                    a.i("v_and_b32 v%d, 0xffff0000, v%d" % (T + 7, T + 9))
                    for j in range(4):
                        a.i("v_mul_f32 v%d, v%d, v%d" % (T + j, T + j, T + 4 + j))
                    a.i("v_cvt_pk_bf16_f32 v%d, v%d, v%d" % (T, T, T + 1))
                    a.i("v_cvt_pk_bf16_f32 v%d, v%d, v%d" % (T + 1, T + 2, T + 3))
                    a.i("buffer_store_dwordx2 v[%d:%d], v14, s[12:15], s23 offen offset:%d" % (T, T + 1, o * 2))
    end(k)
    return k


def assemble(kerns):
    head = []
    for k in kerns:
        head.append("; @launch kernel=%s grid=(%d,%d,%d) block=(%d,%d,%d) lds=%d" % (
            (k.name,) + k.grid + k.block + (k.lds,)))
    s = "\n".join(head) + "\n"
    s += '.amdgcn_target "amdgcn-amd-amdhsa--gfx950"\n.text\n'
    seen = set()
    for k in kerns:
        if k.name in seen:
            continue
        seen.add(k.name)
        s += k.a.text()
    s += '.section .rodata,"a"\n'
    seen = set()
    for k in kerns:
        if k.name in seen:
            continue
        seen.add(k.name)
        s += ".p2align 6\n.amdhsa_kernel %s\n" % k.name
        s += "  .amdhsa_next_free_vgpr %d\n" % k.vgpr
        s += "  .amdhsa_next_free_sgpr %d\n" % k.sgpr
        s += "  .amdhsa_accum_offset %d\n" % min(256, (k.vgpr + 3) // 4 * 4)
        s += "  .amdhsa_group_segment_fixed_size 0\n  .amdhsa_kernarg_size 120\n"
        s += "  .amdhsa_user_sgpr_count 2\n  .amdhsa_user_sgpr_kernarg_segment_ptr 1\n"
        s += "  .amdhsa_system_sgpr_workgroup_id_x 1\n.end_amdhsa_kernel\n"
    return s


def main():
    from attn import gen_attn
    from gemm2 import gen_gemm2
    ks = [
        gen_mod(),
        gen_ln512("ln1_kernel", KA_X, None, WS_H, 512, 0),
        gen_gemm2("gemmq_kernel", 2048, 4096, 512, 256, 128, ("ws", WS_H, 2048 * 1024), ("ka", KA_WQ, 512 * 8192), "q", WM=4, WN=2, NS=3),
        gen_attn(),
        gen_gemm2("gemmo_kernel", 2048, 512, 4096, 64, 64, ("ws", WS_O, 2048 * 8192), ("ka", KA_WO, 4096 * 1024), "x1", NS=8),
        gen_ln512("ln2_kernel", None, WS_X1, WS_H2, 2048, 1536),
        gen_gemm2("gemmin_kernel", 2048, 1792, 512, 128, 128, ("ws", WS_H2, 2048 * 1024), ("ka", KA_WIN, 512 * 3584),
                 "gelu", NS=4),
        gen_ln896(),
        gen_gemm2("gemmsp_kernel", 2048, 896, 2048, 64, 128, ("ka", KA_WSP, 2048 * 4096), ("ws", WS_Z2N, 2048 * 1792),
                 "sp", NS=6),
        gen_gemm2("gemmout_kernel", 2048, 512, 896, 64, 64, ("ws", WS_T, 2048 * 1792), ("ka", KA_WOUT, 896 * 1024),
                 "out", NS=8),
    ]
    open(OUT, "w").write(assemble(ks))
    print("written", OUT)


if __name__ == "__main__":
    main()
```
